```python
import torch

def _softmax(x, axis=-1):
    return torch.softmax(x, dim=axis)
def _gelu(x):
    return torch.nn.functional.gelu(x, approximate="tanh")
def _silu(x):
    return torch.nn.functional.silu(x)
def _sigmoid(x):
    return torch.sigmoid(x)
def _layernorm(x, axis=-1, eps=1e-5):
    m = x.mean(dim=axis, keepdim=True)
    v = x.var(dim=axis, keepdim=True, unbiased=False)
    return (x - m) / torch.sqrt(v + eps)
def _scatter_add(tgt, idx, src, axis=0):
    return tgt.clone().index_add_(axis, idx, src)
def _segment_sum(src, seg, n):
    out = torch.zeros((n,) + src.shape[1:], dtype=src.dtype)
    return out.index_add_(0, seg, src)
def _pad(x, pw):
    flat = tuple(v for pair in reversed(pw) for v in pair)
    return torch.nn.functional.pad(x, flat)

kernel_name = 'recurrent_scan__gqa_block_cached__geglu_ffn__decode'

def setup_inputs():

    _w = (lambda a: (lambda t: t.to(torch.bfloat16) if t.is_floating_point() else t)(torch.as_tensor(a)))
    def _A_setup():
        B, Sq, D = 2, 1, 512
        Hq, Hkv, Sk, Dh = 32, 32, 8192, 128
        assert Hq % Hkv == 0, (Hq, Hkv)
        return {
            "x": _w((lambda *s: torch.randn(*s, dtype=torch.bfloat16) * 0.05)(B, Sq, D)),
            "k_cache": _w((lambda *s: torch.randn(*s, dtype=torch.bfloat16) * 1.6)(B, Hkv, Sk, Dh)),
            "v_cache": _w((lambda *s: torch.randn(*s, dtype=torch.bfloat16) * 0.2)(B, Hkv, Sk, Dh)),
            "wq": _w((lambda *s: torch.randn(*s, dtype=torch.bfloat16) * 1.6)(D, Hq * Dh) * (D ** -0.5)),
            "wo": _w((lambda *s: torch.randn(*s, dtype=torch.bfloat16) * 0.2)(Hq * Dh, D) * ((Hq * Dh) ** -0.5)),
        }
    _A_in = _A_setup()

    def _B_setup():
        B, S, D, F = 2, 1, 512, 1376
        return {
            "x": _w((lambda *s: torch.randn(*s, dtype=torch.bfloat16) * 0.05)(B, S, D)),
            "w_gate": _w((lambda *s: torch.randn(*s, dtype=torch.bfloat16) * 0.1)(D, F)),
            "w_up": _w((lambda *s: torch.randn(*s, dtype=torch.bfloat16) * 0.1)(D, F)),
            "w_down": _w((lambda *s: torch.randn(*s, dtype=torch.bfloat16) * 0.1)(F, D)),
        }
    _B_in = _B_setup()

    return {
        "A_x": _A_in["x"],
        "A_k_cache": _A_in["k_cache"],
        "A_v_cache": _A_in["v_cache"],
        "A_wq": _A_in["wq"],
        "A_wo": _A_in["wo"],
        "B_x": _B_in["x"],
        "B_w_gate": _B_in["w_gate"],
        "B_w_up": _B_in["w_up"],
        "B_w_down": _B_in["w_down"],
    }

def reference(A_x, A_k_cache, A_v_cache, A_wq, A_wo, B_x, B_w_gate, B_w_up, B_w_down):
    def _A_ref(x, k_cache, v_cache, wq, wo):
        B, Sq, D = x.shape
        Hq, Dh = 32, 128
        Hkv = k_cache.shape[1]
        rep = Hq // Hkv
        q = (lambda x, *d: x.permute(*d))((x @ wq).reshape(B, Sq, Hq, Dh), 0, 2, 1, 3)
        k = (lambda x, n, axis: torch.repeat_interleave(x, n, dim=axis))(k_cache, rep, axis=1)
        v = (lambda x, n, axis: torch.repeat_interleave(x, n, dim=axis))(v_cache, rep, axis=1)
        scores = torch.einsum("bhqd,bhkd->bhqk", q, k) * (Dh ** -0.5)
        p = _softmax(scores, axis=-1)
        o = torch.einsum("bhqk,bhkd->bhqd", p, v)
        return (lambda x, *d: x.permute(*d))(o, 0, 2, 1, 3).reshape(B, Sq, Hq * Dh) @ wo

    def _B_ref(x, w_gate, w_up, w_down):
        return (_gelu(x @ w_gate) * (x @ w_up)) @ w_down

    x = A_x
    xn = _layernorm(x, axis=-1)
    s = _A_ref(xn, A_k_cache, A_v_cache, A_wq, A_wo)
    g = _silu(_B_ref(xn, B_w_gate, B_w_up, B_w_down))
    return x + s * g
```

```python
import re

TRANS = ("v_exp_f32", "v_log_f32", "v_rcp_f32", "v_rsq_f32", "v_sqrt_f32", "v_sin_f32", "v_cos_f32")


def _regs(tok):
    tok = tok.strip()
    tok = tok.lstrip("-")
    m = re.fullmatch(r"abs\((.*)\)", tok)
    if m:
        tok = m.group(1)
    m = re.fullmatch(r"([vs])(\d+)", tok)
    if m:
        return [(m.group(1), int(m.group(2)))]
    m = re.fullmatch(r"([vs])\[(\d+):(\d+)\]", tok)
    if m:
        return [(m.group(1), i) for i in range(int(m.group(2)), int(m.group(3)) + 1)]
    if tok == "vcc":
        return [("s", 106), ("s", 107)]
    return []


class Ins:
    __slots__ = ("text", "mn", "kind", "w", "r", "srcc", "slots")


class Asm:
    def __init__(self):
        self.lines = []
        self.hist = []

    def raw(self, s):
        self.lines.append(s)

    def label(self, name):
        self.lines.append("  s_nop 4")
        self.lines.append(name + ":")
        self.hist = []
        self.lines.append("  s_nop 4")

    def comment(self, s):
        self.lines.append("  ; " + s)

    def _parse(self, text):
        ins = Ins()
        ins.text = text
        body = text.split(";")[0].strip()
        parts = body.split(None, 1)
        mn = parts[0]
        ins.mn = mn
        ops = []
        mods = ""
        if len(parts) > 1:
            rest = parts[1]
            toks = []
            depth = 0
            cur = ""
            for ch in rest:
                if ch == "[":
                    depth += 1
                if ch == "]":
                    depth -= 1
                if ch == "," and depth == 0:
                    toks.append(cur)
                    cur = ""
                else:
                    cur += ch
            toks.append(cur)
            last = toks[-1].strip().split(None, 1)
            toks[-1] = last[0] if last else ""
            if len(last) > 1:
                mods = last[1]
            ops = [t.strip() for t in toks]
        ins.slots = 1
        ins.w, ins.r, ins.srcc = [], [], []
        dpp = ("quad_perm" in mods) or ("row_" in mods.replace("row_mask", "")) or mn.endswith("_dpp")
        if mn == "s_nop":
            ins.kind = "nop"
            ins.slots = int(ops[0], 0) + 1
        elif mn.startswith("v_"):
            base = mn.replace("_dpp", "").replace("_e32", "").replace("_e64", "")
            if base.startswith("v_dot2"):
                ins.kind = "dot"
            elif base in TRANS:
                ins.kind = "trans"
            elif base.startswith("v_permlane"):
                ins.kind = "permlane"
            elif base in ("v_readlane_b32", "v_readfirstlane_b32"):
                ins.kind = "readlane"
            else:
                ins.kind = "valu"
            ins.mn = base
            ins.w = _regs(ops[0])
            srcs = ops[1:]
            if base.startswith("v_cmp"):
                pass
            if ins.kind == "permlane":
                ins.w = _regs(ops[0]) + _regs(ops[1])
                ins.r = _regs(ops[0]) + _regs(ops[1])
            else:
                for o in srcs:
                    ins.r += _regs(o)
                if base.startswith("v_fmac") or base.startswith("v_dot2c"):
                    ins.r += _regs(ops[0])
                    if base.startswith("v_dot2c"):
                        ins.srcc = _regs(ops[0])
                if base == "v_dot2_f32_bf16":
                    ins.srcc = _regs(ops[3])
                if base in ("v_cndmask_b32",) and len(ops) == 3:
                    ins.r += _regs("vcc")
            if dpp:
                ins.kind = ins.kind + "+dpp"
        elif mn.startswith("buffer_") or mn.startswith("global_"):
            ins.kind = "vmem"
            if "load" in mn:
                ins.w = _regs(ops[0])
                for o in ops[1:]:
                    ins.r += _regs(o)
            else:
                for o in ops:
                    ins.r += _regs(o)
                if "x4" in mn or "x3" in mn:
                    ins.kind = "vmem+wide"
                    ins.srcc = _regs(ops[0]) if mn.startswith("buffer_") else _regs(ops[1])
        elif mn.startswith("ds_"):
            ins.kind = "ds"
            if "read" in mn or "permute" in mn or "swizzle" in mn:
                ins.w = _regs(ops[0])
                for o in ops[1:]:
                    ins.r += _regs(o)
            else:
                for o in ops:
                    ins.r += _regs(o)
        elif mn.startswith("s_"):
            ins.kind = "salu"
            if ops and not mn.startswith("s_cmp") and not mn.startswith("s_waitcnt") and not mn.startswith("s_cbranch") \
                    and not mn.startswith("s_branch") and not mn.startswith("s_barrier") and not mn.startswith("s_endpgm") \
                    and not mn.startswith("s_setprio") and not mn.startswith("s_sleep"):
                ins.w = _regs(ops[0])
                for o in ops[1:]:
                    ins.r += _regs(o)
            else:
                for o in ops:
                    ins.r += _regs(o)
        else:
            raise ValueError("unknown " + text)
        return ins

    def _need(self, prod, cons):
        need = 0
        pk = prod.kind
        ck = cons.kind
        pvalu = pk.split("+")[0] in ("valu", "dot", "trans", "permlane", "readlane")
        cvalu = ck.split("+")[0] in ("valu", "dot", "trans", "permlane", "readlane")
        pw = set(prod.w)
        cr = set(cons.r)
        cw = set(cons.w)
        vw = {x for x in pw if x[0] == "v"}
        sw = {x for x in pw if x[0] == "s"}
        if pvalu and vw:
            if (vw & cr):
                if "dpp" in ck:
                    need = max(need, 2)
                if ck.startswith("permlane"):
                    need = max(need, 2)
                if ck.startswith("readlane"):
                    need = max(need, 1)
                if pk.startswith("trans") and not ck.startswith("trans"):
                    need = max(need, 1)
            if pk.startswith("dot"):
                ov = vw & (cr | cw)
                if ov:
                    same = (cons.mn == prod.mn)
                    if same and ov <= set(cons.srcc):
                        others = set(cons.r) - set(cons.srcc)
                        if ov & others:
                            need = max(need, 3)
                    else:
                        need = max(need, 3)
        if pvalu and sw:
            if sw & cr:
                if cvalu:
                    need = max(need, 2)
                    if ck.startswith("readlane"):
                        need = max(need, 4)
                if ck.startswith("vmem"):
                    need = max(need, 5)
                if ck == "salu":
                    need = max(need, 1)
        if pk == "vmem+wide" and cvalu:
            if set(prod.srcc) & cw:
                need = max(need, 2)
        return need

    def __call__(self, text):
        ins = self._parse(text)
        dist = 0
        pad = 0
        for prev in reversed(self.hist):
            n = self._need(prev, ins)
            if n > dist:
                pad = max(pad, n - dist)
            dist += prev.slots
            if dist >= 6:
                break
        if pad > 0:
            nop = self._parse("s_nop %d" % (pad - 1))
            self.lines.append("  s_nop %d" % (pad - 1))
            self.hist.append(nop)
        self.lines.append("  " + text)
        self.hist.append(ins)
        if len(self.hist) > 12:
            self.hist = self.hist[-12:]

    def text(self):
        return "\n".join(self.lines) + "\n"
```

```python
import sys
import os
sys.path.insert(0, os.path.dirname(os.path.abspath(__file__)))
from asmlib import Asm

NAME = "recurrent_scan__gqa_block_cached__geglu_ffn__decode"

CFG = dict(D=12, NT=True, INTERLEAVE=True)
for a in sys.argv[2:]:
    k, v = a.split("=")
    CFG[k] = int(v)
D = CFG["D"]
NT = " nt" if CFG["NT"] else ""
INTERLEAVE = CFG["INTERLEAVE"]

LOG2E = "0x3fb8aa3b"
SCALE = "0x3db504f3"
HI = "0xffff0000"

WS_T = 0
WS_ML = 512 * 1024
WS_Y = 1024 * 1024
NFFN = 172

L_XN = 0
L_QP = 4096
L_QB = 12288
L_FP = 12544
L_ML = 13568
L_OP = 13824
L_TP = 22528
L_TOTAL = 55296


def v(n):
    return "v%d" % n


def vr(n, c):
    return "v[%d:%d]" % (n, n + c - 1)


def sr(n, c):
    return "s[%d:%d]" % (n, n + c - 1)


def srd(A, dst, ptr, nbytes):
    A("s_mov_b32 s%d, s%d" % (dst, ptr))
    A("s_and_b32 s%d, s%d, 0xffff" % (dst + 1, ptr + 1))
    if isinstance(nbytes, str):
        A("s_mov_b32 s%d, %s" % (dst + 2, nbytes))
    else:
        A("s_mov_b32 s%d, 0x%x" % (dst + 2, nbytes))
    A("s_mov_b32 s%d, 0x00020000" % (dst + 3))


DPPF = "row_mask:0xf bank_mask:0xf"


def row_allreduce(A, op, x):
    A("%s_dpp %s, %s, %s quad_perm:[1,0,3,2] %s" % (op, x, x, x, DPPF))
    A("%s_dpp %s, %s, %s quad_perm:[2,3,0,1] %s" % (op, x, x, x, DPPF))
    A("%s_dpp %s, %s, %s row_half_mirror %s" % (op, x, x, x, DPPF))
    A("%s_dpp %s, %s, %s row_mirror %s" % (op, x, x, x, DPPF))


def xrow_allreduce(A, op, x, t):
    A("v_mov_b32 %s, %s" % (t, x))
    A("v_permlane16_swap_b32 %s, %s" % (x, t))
    A("%s %s, %s, %s" % (op, x, x, t))
    A("v_mov_b32 %s, %s" % (t, x))
    A("v_permlane32_swap_b32 %s, %s" % (x, t))
    A("%s %s, %s, %s" % (op, x, x, t))


def rows_merge8(A, a):
    for i in range(0, 8, 2):
        A("v_permlane32_swap_b32 %s, %s" % (a[i], a[i + 1]))
    for i in range(0, 8, 2):
        A("v_add_f32 %s, %s, %s" % (a[i], a[i], a[i + 1]))
    A("v_permlane16_swap_b32 %s, %s" % (a[0], a[2]))
    A("v_permlane16_swap_b32 %s, %s" % (a[4], a[6]))
    A("v_add_f32 %s, %s, %s" % (a[0], a[0], a[2]))
    A("v_add_f32 %s, %s, %s" % (a[4], a[4], a[6]))


def rne2(A, a, b, t):
    A("v_cvt_pk_bf16_f32 %s, %s, %s" % (t, a, b))
    A("v_lshlrev_b32 %s, 16, %s" % (a, t))
    A("v_and_b32 %s, %s, %s" % (b, HI, t))


def rne1(A, a, t):
    A("v_cvt_pk_bf16_f32 %s, %s, %s" % (t, a, a))
    A("v_lshlrev_b32 %s, 16, %s" % (a, t))


def layernorm(A, X, vaddr, off):
    f = [v(32 + i) for i in range(8)]
    S, T, MEAN, R = "v40", "v41", "v42", "v43"
    for k in range(4):
        A("v_lshlrev_b32 %s, 16, v%d" % (f[2 * k], X + k))
        A("v_and_b32 %s, %s, v%d" % (f[2 * k + 1], HI, X + k))
    A("v_add_f32 %s, %s, %s" % (S, f[0], f[1]))
    A("v_add_f32 %s, %s, %s" % (T, f[2], f[3]))
    A("v_add_f32 %s, %s, %s" % (R, f[4], f[5]))
    A("v_add_f32 %s, %s, %s" % (MEAN, f[6], f[7]))
    A("v_add_f32 %s, %s, %s" % (S, S, T))
    A("v_add_f32 %s, %s, %s" % (R, R, MEAN))
    A("v_add_f32 %s, %s, %s" % (S, S, R))
    row_allreduce(A, "v_add_f32", S)
    xrow_allreduce(A, "v_add_f32", S, T)
    A("v_mul_f32 %s, 0x3b000000, %s" % (MEAN, S))
    for k in range(8):
        A("v_sub_f32 %s, %s, %s" % (R, f[k], MEAN))
        if k == 0:
            A("v_mul_f32 %s, %s, %s" % (S, R, R))
        else:
            A("v_fmac_f32 %s, %s, %s" % (S, R, R))
    row_allreduce(A, "v_add_f32", S)
    xrow_allreduce(A, "v_add_f32", S, T)
    A("v_mul_f32 %s, 0x3b000000, %s" % (S, S))
    rne2(A, MEAN, S, T)
    A("v_add_f32 %s, 0x3727c5ac, %s" % (S, S))
    rne1(A, S, T)
    A("v_sqrt_f32 %s, %s" % (S, S))
    rne1(A, S, T)
    A("v_rcp_f32 %s, %s" % (R, S))
    Q0, Q1 = "v44", "v45"
    for k in range(0, 8, 2):
        A("v_sub_f32 %s, %s, %s" % (f[k], f[k], MEAN))
        A("v_sub_f32 %s, %s, %s" % (f[k + 1], f[k + 1], MEAN))
        rne2(A, f[k], f[k + 1], T)
        A("v_mul_f32 %s, %s, %s" % (Q0, f[k], R))
        A("v_mul_f32 %s, %s, %s" % (Q1, f[k + 1], R))
        A("v_fma_f32 %s, -%s, %s, %s" % (f[k], Q0, S, f[k]))
        A("v_fma_f32 %s, -%s, %s, %s" % (f[k + 1], Q1, S, f[k + 1]))
        A("v_fma_f32 %s, %s, %s, %s" % (f[k], f[k], R, Q0))
        A("v_fma_f32 %s, %s, %s, %s" % (f[k + 1], f[k + 1], R, Q1))
        rne2(A, f[k], f[k + 1], T)
    A("ds_write_b128 %s, v[32:35] offset:%d" % (vaddr, off))
    A("ds_write_b128 %s, v[36:39] offset:%d" % (vaddr, off + 16))


def gen_k1():
    A = Asm()
    sK, sV, sWQ, sWO, sX, sF, sWD, sWS = 28, 32, 36, 40, 44, 48, 52, 56
    sWAVE, sH, sB, sC, sJ, sJV, sT0, sT1 = 60, 61, 62, 63, 64, 65, 66, 67
    sHH, sHL = 68, 84
    sOFF = 100
    vTID, vLANE, vKV, vA = "v0", "v1", "v2", "v3"
    Q = 4
    ACC = 8
    PL, PH = 16, 24
    AA = 32
    vC, vD = "v36", "v37"
    vDI = "v46"
    vG = "v47"
    WQ = 48
    RING = 80
    assert RING + 4 * D <= 128

    A("s_cmp_ge_u32 s2, 256")
    A("s_cbranch_scc1 K1_END")
    A("s_load_dwordx16 s[4:19], s[0:1], 0")
    A("s_load_dwordx8 s[20:27], s[0:1], 64")
    A("v_and_b32 %s, 63, %s" % (vLANE, vTID))
    A("v_lshrrev_b32 v3, 6, %s" % vTID)
    A("v_readfirstlane_b32 s%d, v3" % sWAVE)
    A("s_and_b32 s%d, s2, 31" % sH)
    A("s_lshr_b32 s%d, s2, 7" % sB)
    A("s_bfe_u32 s%d, s2, 0x20005" % sC)
    A("s_and_b32 s%d, s2, 0xc0" % sJ)
    A("s_and_b32 s%d, s2, 7" % sT0)
    A("s_lshl_b32 s%d, s%d, 3" % (sT0, sT0))
    A("s_add_u32 s%d, s%d, s%d" % (sJ, sJ, sT0))
    A("s_bfe_u32 s%d, s2, 0x30003" % sT0)
    A("s_add_u32 s%d, s%d, s%d" % (sJ, sJ, sT0))
    A("s_cmp_lt_u32 s%d, %d" % (sJ, NFFN))
    A("s_cselect_b32 s%d, 1, 0" % sJV)
    A("v_lshrrev_b32 %s, 4, %s" % (vG, vLANE))
    A("v_and_b32 v38, 1, %s" % vG)
    A("v_lshlrev_b32 v38, 1, v38")
    A("v_lshrrev_b32 v39, 1, %s" % vG)
    A("v_or_b32 v38, v38, v39")
    A("v_and_b32 v39, 15, %s" % vLANE)
    A("v_lshl_add_u32 %s, v39, 3, v38" % vDI)
    A("s_waitcnt lgkmcnt(0)")
    srd(A, sX, 4, 2048)
    srd(A, sK, 6, 0x8000000)
    srd(A, sV, 8, 0x8000000)
    srd(A, sWQ, 10, 0x400000)
    srd(A, sWO, 12, 0x400000)
    srd(A, sWD, 20, 1376 * 1024)
    srd(A, sWS, 26, 0x200000)
    A("s_cmp_lt_u32 s%d, 8" % sWAVE)
    A("s_cselect_b32 s%d, s16, s18" % sF)
    A("s_cselect_b32 s%d, s17, s19" % (sF + 1))
    A("s_and_b32 s%d, s%d, 0xffff" % (sF + 1, sF + 1))
    A("s_cmp_eq_u32 s%d, 1" % sJV)
    A("s_cselect_b32 s%d, 0x%x, 0" % (sF + 2, 512 * 2752))
    A("s_mov_b32 s%d, 0x00020000" % (sF + 3))

    A("v_lshlrev_b32 %s, 4, %s" % (vA, vLANE))
    A("buffer_load_dwordx4 v[8:11], %s, %s, 0 offen" % (vA, sr(sX, 4)))
    A("buffer_load_dwordx4 v[12:15], %s, %s, 0 offen offset:1024" % (vA, sr(sX, 4)))
    A("s_lshl_b32 s%d, s%d, 18" % (sT0, sWAVE))
    A("s_lshl_b32 s%d, s%d, 8" % (sT1, sH))
    A("s_add_u32 s%d, s%d, s%d" % (sT0, sT0, sT1))
    A("v_lshlrev_b32 v38, 13, %s" % vG)
    A("v_lshl_add_u32 v38, v39, 4, v38")
    A("v_add_u32 v38, s%d, v38" % sT0)
    for i in range(8):
        A("s_mov_b32 s%d, 0x%x" % (sOFF, i * 32768))
        A("buffer_load_dwordx4 %s, v38, %s, s%d offen" % (vr(WQ + 4 * i, 4), sr(sWQ, 4), sOFF))
    A("s_and_b32 s%d, s%d, 7" % (sT0, sWAVE))
    A("s_lshl_b32 s%d, s%d, 6" % (sT0, sT0))
    A("v_add_u32 v38, s%d, %s" % (sT0, vLANE))
    A("s_movk_i32 s%d, 2752" % sT1)
    A("v_mul_lo_u32 v38, v38, s%d" % sT1)
    A("s_lshl_b32 s%d, s%d, 4" % (sT1, sJ))
    A("v_add_u32 v38, s%d, v38" % sT1)
    A("buffer_load_dwordx4 v[28:31], v38, %s, 0 offen" % sr(sF, 4))
    A("s_lshl_b32 s%d, s%d, 5" % (sT0, sB))
    A("s_add_u32 s%d, s%d, s%d" % (sT0, sT0, sH))
    A("s_lshl_b32 s%d, s%d, 21" % (sT0, sT0))
    A("s_lshl_b32 s%d, s%d, 19" % (sT1, sC))
    A("s_add_u32 s%d, s%d, s%d" % (sT0, sT0, sT1))
    if INTERLEAVE:
        A("s_lshl_b32 s%d, s%d, 10" % (sT1, sWAVE))
    else:
        A("s_lshl_b32 s%d, s%d, 15" % (sT1, sWAVE))
    A("s_add_u32 s%d, s%d, s%d" % (sT0, sT0, sT1))
    A("v_add_u32 %s, s%d, %s" % (vKV, sT0, vA))

    def issue(n):
        if n < 64:
            i = n & 31
            srdn = sK if n < 32 else sV
            dst = RING + 4 * (n % D)
            if INTERLEAVE:
                so, io = i * 16384, 0
            else:
                so, io = (i >> 2) * 4096, (i & 3) * 1024
            A("s_mov_b32 s%d, 0x%x" % (sOFF, so))
            A("buffer_load_dwordx4 %s, %s, %s, s%d offen offset:%d%s" % (vr(dst, 4), vKV, sr(srdn, 4), sOFF, io, NT))
        else:
            r = n - 64
            if r == 0:
                A("s_lshl_b32 s%d, s%d, 17" % (sT0, sH))
                A("s_lshl_b32 s%d, s%d, 13" % (sT1, sWAVE))
                A("s_add_u32 s%d, s%d, s%d" % (sT0, sT0, sT1))
                A("v_lshlrev_b32 %s, 4, %s" % (vA, vLANE))
                A("v_add_u32 %s, s%d, %s" % (vA, sT0, vA))
            A("s_mov_b32 s%d, 0x%x" % (sOFF, (r >> 2) * 4096))
            A("buffer_load_dwordx4 %s, %s, %s, s%d offen offset:%d" % (vr(WQ + 4 * r, 4), vA, sr(sWO, 4), sOFF, (r & 3) * 1024))

    for n in range(D):
        issue(n)
    NTOT = 72

    A("s_waitcnt vmcnt(%d)" % (D + 1 + 8))
    A("v_lshlrev_b32 v3, 5, %s" % vLANE)
    layernorm(A, 8, "v3", L_XN)
    layernorm(A, 12, "v3", L_XN + 2048)
    A("s_waitcnt lgkmcnt(0)")

    A("s_and_b32 s%d, s%d, 7" % (sT0, sWAVE))
    A("s_lshl_b32 s%d, s%d, 8" % (sT0, sT0))
    A("v_lshlrev_b32 v3, 2, %s" % vLANE)
    A("v_add_u32 v3, s%d, v3" % sT0)
    A("ds_read_b32 v8, v3 offset:%d" % (L_XN))
    A("ds_read_b32 v9, v3 offset:%d" % (L_XN + 2048))
    A("s_waitcnt lgkmcnt(0)")
    A("v_lshrrev_b32 v10, 16, v8")
    A("v_lshrrev_b32 v11, 16, v9")
    A("s_waitcnt vmcnt(%d)" % D)
    FA = [v(12 + i) for i in range(16)]
    for b in range(2):
        for k in range(4):
            A("v_dot2_f32_bf16 %s, v%d, v%d, 0" % (FA[b * 8 + 2 * k], 28 + k, 10 + b))
            A("v_dot2_f32_bf16 %s, v%d, v%d, 0" % (FA[b * 8 + 2 * k + 1], 28 + k, 8 + b))
    for i in range(0, 16, 2):
        A("v_permlane32_swap_b32 %s, %s" % (FA[i], FA[i + 1]))
    for i in range(0, 16, 2):
        A("v_add_f32 %s, %s, %s" % (FA[i], FA[i], FA[i + 1]))
    for i in range(0, 16, 4):
        A("v_permlane16_swap_b32 %s, %s" % (FA[i], FA[i + 2]))
    for i in range(0, 16, 4):
        A("v_add_f32 %s, %s, %s" % (FA[i], FA[i], FA[i + 2]))
    S = [FA[0], FA[4], FA[8], FA[12]]
    U0, U1, Z = "v32", "v33", "v34"
    A("v_add_f32_dpp %s, %s, %s row_ror:8 row_mask:0xf bank_mask:0x3" % (U0, S[0], S[0]))
    A("v_add_f32_dpp %s, %s, %s row_ror:8 row_mask:0xf bank_mask:0xc" % (U0, S[1], S[1]))
    A("v_add_f32_dpp %s, %s, %s row_ror:8 row_mask:0xf bank_mask:0x3" % (U1, S[2], S[2]))
    A("v_add_f32_dpp %s, %s, %s row_ror:8 row_mask:0xf bank_mask:0xc" % (U1, S[3], S[3]))
    A("v_add_f32_dpp %s, %s, %s row_half_mirror row_mask:0xf bank_mask:0x5" % (Z, U0, U0))
    A("v_add_f32_dpp %s, %s, %s row_half_mirror row_mask:0xf bank_mask:0xa" % (Z, U1, U1))
    A("v_add_f32_dpp %s, %s, %s quad_perm:[1,0,3,2] %s" % (Z, Z, Z, DPPF))
    A("v_add_f32_dpp %s, %s, %s quad_perm:[2,3,0,1] %s" % (Z, Z, Z, DPPF))
    A("v_bfe_u32 v35, %s, 2, 1" % vLANE)
    A("v_bfe_u32 v38, %s, 3, 1" % vLANE)
    A("v_lshl_add_u32 v35, v35, 1, v38")
    A("v_and_b32 v38, 7, %s" % vDI)
    A("v_lshl_add_u32 v35, v35, 2, v38")
    A("s_lshl_b32 s%d, s%d, 6" % (sT0, sWAVE))
    A("v_lshlrev_b32 v35, 2, v35")
    A("v_add_u32 v35, s%d, v35" % sT0)
    A("ds_write_b32 v35, %s offset:%d" % (Z, L_FP))

    A("s_lshl_b32 s%d, s%d, 11" % (sT0, sB))
    A("s_lshl_b32 s%d, s%d, 7" % (sT1, sWAVE))
    A("s_add_u32 s%d, s%d, s%d" % (sT0, sT0, sT1))
    A("v_lshlrev_b32 v3, 2, %s" % vG)
    A("v_add_u32 v3, s%d, v3" % sT0)
    for i in range(8):
        A("ds_read_b32 v%d, v3 offset:%d" % (16 + i, L_XN + 16 * i))
    A("s_waitcnt lgkmcnt(0)")
    for i in range(8):
        A("v_lshrrev_b32 v%d, 16, v%d" % (24 + i, 16 + i))
    qa = [v(8 + i) for i in range(8)]
    for i in range(8):
        for k in range(4):
            c0 = "0" if i == 0 else qa[2 * k]
            c1 = "0" if i == 0 else qa[2 * k + 1]
            A("v_dot2_f32_bf16 %s, v%d, v%d, %s" % (qa[2 * k], WQ + 4 * i + k, 24 + i, c0))
            A("v_dot2_f32_bf16 %s, v%d, v%d, %s" % (qa[2 * k + 1], WQ + 4 * i + k, 16 + i, c1))
    rows_merge8(A, qa)
    A("s_lshl_b32 s%d, s%d, 9" % (sT0, sWAVE))
    A("v_lshlrev_b32 v3, 2, %s" % vDI)
    A("v_add_u32 v3, s%d, v3" % sT0)
    A("v_add_u32 v3, 0x%x, v3" % L_QP)
    A("ds_write2_b32 v3, %s, %s offset0:0 offset1:4" % (qa[0], qa[4]))
    A("s_waitcnt lgkmcnt(0)")
    A("s_barrier")
    A("v_and_b32 v38, 7, %s" % vLANE)
    A("v_lshrrev_b32 v39, 3, %s" % vLANE)
    A("v_lshlrev_b32 v3, 9, v39")
    A("v_lshl_add_u32 v3, v38, 2, v3")
    A("s_lshl_b32 s%d, s%d, 5" % (sT0, sWAVE))
    A("v_add_u32 v3, s%d, v3" % sT0)
    A("ds_read_b32 v8, v3 offset:%d" % L_QP)
    A("ds_read_b32 v9, v3 offset:%d" % (L_QP + 4096))
    A("s_waitcnt lgkmcnt(0)")
    A("v_add_f32 v8, v8, v9")
    A("v_add_f32_dpp v8, v8, v8 row_ror:8 %s" % DPPF)
    xrow_allreduce(A, "v_add_f32", "v8", "v9")
    A("v_cvt_pk_bf16_f32 v8, v8, v8")
    A("s_lshl_b32 s%d, s%d, 4" % (sT0, sWAVE))
    A("v_lshlrev_b32 v3, 1, v38")
    A("v_add_u32 v3, s%d, v3" % sT0)
    A("ds_write_b16 v3, v8 offset:%d" % L_QB)
    A("s_waitcnt lgkmcnt(0)")
    A("s_barrier")
    A("v_and_b32 v3, 15, %s" % vLANE)
    A("v_lshlrev_b32 v3, 4, v3")
    A("ds_read_b128 %s, v3 offset:%d" % (vr(Q, 4), L_QB))

    A("s_cmp_lg_u32 s%d, 0" % sWAVE)
    A("s_cbranch_scc1 K1_NOFFN")
    A("s_cmp_lg_u32 s%d, 1" % sJV)
    A("s_cbranch_scc1 K1_NOFFN")
    A("s_lshl_b32 s%d, s%d, 13" % (sT0, sJ))
    A("v_lshlrev_b32 v3, 4, %s" % vLANE)
    A("v_add_u32 v3, s%d, v3" % sT0)
    for f in range(8):
        A("s_mov_b32 s%d, 0x%x" % (sOFF, (f >> 2) * 4096))
        A("buffer_load_dwordx4 %s, v3, %s, s%d offen offset:%d" % (vr(WQ + 4 * f, 4), sr(sWD, 4), sOFF, (f & 3) * 1024))
    A("v_lshlrev_b32 v38, 2, %s" % vLANE)
    A("ds_read_b32 v8, v38 offset:%d" % (L_FP))
    A("ds_read_b32 v9, v38 offset:%d" % (L_FP + 256))
    A("ds_read_b32 v10, v38 offset:%d" % (L_FP + 512))
    A("ds_read_b32 v11, v38 offset:%d" % (L_FP + 768))
    A("s_waitcnt lgkmcnt(0)")
    A("v_add_f32 v8, v8, v9")
    A("v_add_f32 v10, v10, v11")
    xrow_allreduce(A, "v_add_f32", "v8", "v9")
    xrow_allreduce(A, "v_add_f32", "v10", "v11")
    rne2(A, "v8", "v10", "v9")
    A("v_mul_f32 v9, v8, v8")
    A("v_mov_b32 v11, 0x3f4c422a")
    A("v_fmac_f32 v11, 0x3d12220c, v9")
    A("v_mul_f32 v11, v11, v8")
    A("v_mul_f32 v11, 0xc038aa3b, v11")
    A("v_exp_f32 v11, v11")
    A("v_add_f32 v11, 1.0, v11")
    A("v_rcp_f32 v11, v11")
    A("v_mul_f32 v8, v8, v11")
    rne1(A, "v8", "v9")
    A("v_mul_f32 v8, v8, v10")
    rne1(A, "v8", "v9")
    for i in range(16):
        A("v_readlane_b32 s%d, v8, %d" % (sHH + i, i))
    for i in range(16):
        A("s_lshr_b32 s%d, s%d, 16" % (sHL + i, sHH + i))
    A("s_waitcnt vmcnt(0)")
    YA = [v(8 + i) for i in range(16)]
    for f in range(8):
        for k in range(4):
            for b in range(2):
                c0 = "0" if f == 0 else YA[b * 8 + 2 * k]
                c1 = "0" if f == 0 else YA[b * 8 + 2 * k + 1]
                A("v_dot2_f32_bf16 %s, v%d, s%d, %s" % (YA[b * 8 + 2 * k], WQ + 4 * f + k, sHL + b * 8 + f, c0))
                A("v_dot2_f32_bf16 %s, v%d, s%d, %s" % (YA[b * 8 + 2 * k + 1], WQ + 4 * f + k, sHH + b * 8 + f, c1))
    A("s_lshl_b32 s%d, s%d, 12" % (sT0, sJ))
    A("s_add_u32 s%d, s%d, 0x%x" % (sT0, sT0, WS_Y))
    A("v_lshlrev_b32 v3, 5, %s" % vLANE)
    A("v_add_u32 v3, s%d, v3" % sT0)
    A("buffer_store_dwordx4 v[8:11], v3, %s, 0 offen" % sr(sWS, 4))
    A("buffer_store_dwordx4 v[12:15], v3, %s, 0 offen offset:16" % sr(sWS, 4))
    A("buffer_store_dwordx4 v[16:19], v3, %s, 0 offen offset:2048" % sr(sWS, 4))
    A("buffer_store_dwordx4 v[20:23], v3, %s, 0 offen offset:2064" % sr(sWS, 4))
    A.label("K1_NOFFN")
    A("s_waitcnt lgkmcnt(0)")

    def waitfor(n):
        outstanding_after = min(n + D - 1, NTOT - 1) - n
        A("s_waitcnt vmcnt(%d)" % outstanding_after)

    a = [v(AA + i) for i in range(4)]
    for I in range(8):
        for t in range(4):
            n = 4 * I + t
            waitfor(n)
            base = RING + 4 * (n % D)
            for k in range(4):
                c = "0" if k == 0 else a[t]
                A("v_dot2_f32_bf16 %s, v%d, v%d, %s" % (a[t], base + k, Q + k, c))
            if n + D < NTOT:
                issue(n + D)
        for t in range(4):
            A("v_add_f32_dpp %s, %s, %s quad_perm:[1,0,3,2] %s" % (a[t], a[t], a[t], DPPF))
        for t in range(4):
            A("v_add_f32_dpp %s, %s, %s quad_perm:[2,3,0,1] %s" % (a[t], a[t], a[t], DPPF))
        A("v_add_f32_dpp %s, %s, %s row_half_mirror row_mask:0xf bank_mask:0x5" % (vC, a[0], a[0]))
        A("v_add_f32_dpp %s, %s, %s row_half_mirror row_mask:0xf bank_mask:0xa" % (vC, a[1], a[1]))
        A("v_add_f32_dpp %s, %s, %s row_half_mirror row_mask:0xf bank_mask:0x5" % (vD, a[2], a[2]))
        A("v_add_f32_dpp %s, %s, %s row_half_mirror row_mask:0xf bank_mask:0xa" % (vD, a[3], a[3]))
        A("v_add_f32_dpp v%d, %s, %s row_ror:8 row_mask:0xf bank_mask:0x3" % (PL + I, vC, vC))
        A("v_add_f32_dpp v%d, %s, %s row_ror:8 row_mask:0xf bank_mask:0xc" % (PL + I, vD, vD))

    M = [v(PL + i) for i in range(8)]
    T = "v38"
    for i in range(0, 8, 2):
        rne2(A, M[i], M[i + 1], T)
        A("v_mul_f32 %s, %s, %s" % (M[i], SCALE, M[i]))
        A("v_mul_f32 %s, %s, %s" % (M[i + 1], SCALE, M[i + 1]))
        rne2(A, M[i], M[i + 1], T)
    vM, vL = "v40", "v41"
    A("v_max3_f32 %s, %s, %s, %s" % (vM, M[0], M[1], M[2]))
    A("v_max3_f32 %s, %s, %s, %s" % (vM, vM, M[3], M[4]))
    A("v_max3_f32 %s, %s, %s, %s" % (vM, vM, M[5], M[6]))
    A("v_max_f32 %s, %s, %s" % (vM, vM, M[7]))
    A("v_max_f32_dpp %s, %s, %s row_ror:4 %s" % (vM, vM, vM, DPPF))
    A("v_max_f32_dpp %s, %s, %s row_ror:8 %s" % (vM, vM, vM, DPPF))
    xrow_allreduce(A, "v_max_f32", vM, T)
    A("v_mul_f32 v39, %s, %s" % (LOG2E, vM))
    A("s_mov_b32 s%d, %s" % (sT0, LOG2E))
    for i in range(8):
        A("v_fma_f32 %s, %s, s%d, -v39" % (M[i], M[i], sT0))
    for i in range(8):
        A("v_exp_f32 %s, %s" % (M[i], M[i]))
    A("v_add_f32 %s, %s, %s" % (vL, M[0], M[1]))
    A("v_add_f32 %s, %s, %s" % (T, M[2], M[3]))
    A("v_add_f32 v39, %s, %s" % (M[4], M[5]))
    A("v_add_f32 v42, %s, %s" % (M[6], M[7]))
    A("v_add_f32 %s, %s, %s" % (vL, vL, T))
    A("v_add_f32 v39, v39, v42")
    A("v_add_f32 %s, %s, v39" % (vL, vL))
    A("v_add_f32_dpp %s, %s, %s row_ror:4 %s" % (vL, vL, vL, DPPF))
    A("v_add_f32_dpp %s, %s, %s row_ror:8 %s" % (vL, vL, vL, DPPF))
    xrow_allreduce(A, "v_add_f32", vL, T)
    for i in range(0, 8, 2):
        A("v_cvt_pk_bf16_f32 %s, %s, %s" % (T, M[i], M[i + 1]))
        A("v_lshlrev_b32 v%d, 16, %s" % (PH + i, T))
        A("v_and_b32 v%d, %s, %s" % (PH + i + 1, HI, T))
        A("v_and_b32 v%d, 0xffff, %s" % (PL + i, T))
        A("v_lshrrev_b32 v%d, 16, %s" % (PL + i + 1, T))
    acc = [v(ACC + i) for i in range(8)]
    for i in range(8):
        A("v_mov_b32 %s, 0" % acc[i])

    for i in range(32):
        n = 32 + i
        I, qd = i >> 2, i & 3
        waitfor(n)
        base = RING + 4 * (n % D)
        for k in range(4):
            A("v_dot2c_f32_bf16_dpp %s, v%d, v%d row_newbcast:%d %s" % (acc[2 * k], PL + I, base + k, 4 * qd, DPPF))
            A("v_dot2c_f32_bf16_dpp %s, v%d, v%d row_newbcast:%d %s" % (acc[2 * k + 1], PH + I, base + k, 4 * qd, DPPF))
        if n + D < NTOT:
            issue(n + D)

    rows_merge8(A, acc)
    A("s_lshl_b32 s%d, s%d, 9" % (sT0, sWAVE))
    A("v_lshlrev_b32 v3, 2, %s" % vDI)
    A("v_add_u32 v3, s%d, v3" % sT0)
    A("v_add_u32 v3, 0x%x, v3" % L_OP)
    A("ds_write2_b32 v3, %s, %s offset0:0 offset1:4" % (acc[0], acc[4]))
    A("s_lshl_b32 s%d, s%d, 3" % (sT0, sWAVE))
    A("v_mov_b32 v3, s%d" % sT0)
    A("ds_write_b64 v3, v[40:41] offset:%d" % L_ML)
    A("s_waitcnt lgkmcnt(0)")
    A("s_barrier")
    A("v_and_b32 v38, 7, %s" % vLANE)
    A("v_lshrrev_b32 v39, 3, %s" % vLANE)
    A("v_lshlrev_b32 v3, 3, v39")
    A("ds_read_b64 v[16:17], v3 offset:%d" % L_ML)
    A("ds_read_b64 v[18:19], v3 offset:%d" % (L_ML + 64))
    A("v_lshlrev_b32 v3, 9, v39")
    A("v_lshl_add_u32 v3, v38, 2, v3")
    A("s_lshl_b32 s%d, s%d, 5" % (sT0, sWAVE))
    A("v_add_u32 v3, s%d, v3" % sT0)
    A("ds_read_b32 v20, v3 offset:%d" % L_OP)
    A("ds_read_b32 v21, v3 offset:%d" % (L_OP + 4096))
    A("s_waitcnt lgkmcnt(0)")
    A("v_max_f32 v22, v16, v18")
    A("v_max_f32_dpp v22, v22, v22 row_ror:8 %s" % DPPF)
    xrow_allreduce(A, "v_max_f32", "v22", "v23")
    A("v_sub_f32 v16, v16, v22")
    A("v_sub_f32 v18, v18, v22")
    A("v_mul_f32 v16, %s, v16" % LOG2E)
    A("v_mul_f32 v18, %s, v18" % LOG2E)
    A("v_exp_f32 v16, v16")
    A("v_exp_f32 v18, v18")
    A("v_mul_f32 v24, v16, v20")
    A("v_mul_f32 v23, v16, v17")
    A("v_fmac_f32 v24, v18, v21")
    A("v_fmac_f32 v23, v18, v19")
    A("v_add_f32_dpp v24, v24, v24 row_ror:8 %s" % DPPF)
    A("v_add_f32_dpp v23, v23, v23 row_ror:8 %s" % DPPF)
    xrow_allreduce(A, "v_add_f32", "v24", "v25")
    xrow_allreduce(A, "v_add_f32", "v23", "v25")
    A("s_cmp_lg_u32 s%d, 0" % sWAVE)
    A("s_cbranch_scc1 K1_NOML")
    A("s_lshl_b32 s%d, s2, 3" % sT0)
    A("s_add_u32 s%d, s%d, 0x%x" % (sT0, sT0, WS_ML))
    A("v_mov_b32 v3, s%d" % sT0)
    A("buffer_store_dwordx2 v[22:23], v3, %s, 0 offen" % sr(sWS, 4))
    A.label("K1_NOML")
    A("s_waitcnt vmcnt(0)")
    for r in range(8):
        for k in range(4):
            A("v_lshlrev_b32 v26, 16, v%d" % (WQ + 4 * r + k))
            A("v_and_b32 v27, %s, v%d" % (HI, WQ + 4 * r + k))
            op = "v_mul_f32_dpp" if r == 0 else "v_fmac_f32_dpp"
            A("%s %s, v24, v26 row_newbcast:%d %s" % (op, acc[2 * k], r, DPPF))
            A("%s %s, v24, v27 row_newbcast:%d %s" % (op, acc[2 * k + 1], r, DPPF))
    A("s_lshl_b32 s%d, s%d, 11" % (sT0, sWAVE))
    A("v_lshlrev_b32 v3, 5, %s" % vLANE)
    A("v_add_u32 v3, s%d, v3" % sT0)
    A("ds_write_b128 v3, v[8:11] offset:%d" % L_TP)
    A("ds_write_b128 v3, v[12:15] offset:%d" % (L_TP + 16))
    A("s_waitcnt lgkmcnt(0)")
    A("s_barrier")
    A("s_cmp_ge_u32 s%d, 8" % sWAVE)
    A("s_cbranch_scc1 K1_END")
    A("v_lshlrev_b32 v3, 2, %s" % vTID)
    for i in range(16):
        A("ds_read_b32 v%d, v3 offset:%d" % (16 + i, L_TP + 2048 * i))
    A("s_waitcnt lgkmcnt(0)")
    for i in range(8):
        A("v_add_f32 v%d, v%d, v%d" % (16 + i, 16 + i, 24 + i))
    for i in range(4):
        A("v_add_f32 v%d, v%d, v%d" % (16 + i, 16 + i, 20 + i))
    A("v_add_f32 v16, v16, v18")
    A("v_add_f32 v17, v17, v19")
    A("v_add_f32 v16, v16, v17")
    A("s_lshl_b32 s%d, s2, 11" % sT0)
    A("v_add_u32 v3, s%d, v3" % sT0)
    A("buffer_store_dword v16, v3, %s, 0 offen" % sr(sWS, 4))
    A.label("K1_END")
    A("s_endpgm")
    return A.text()


def gen_k2():
    A = Asm()
    sT, sY, sX, sO = 28, 32, 36, 40
    sB, sCS, sT0, sT1 = 44, 45, 46, 47
    A("s_cmp_ge_u32 s2, 64")
    A("s_cbranch_scc1 K2_END")
    A("s_load_dwordx2 s[4:5], s[0:1], 0")
    A("s_load_dwordx2 s[6:7], s[0:1], 72")
    A("s_load_dwordx2 s[8:9], s[0:1], 88")
    A("s_lshr_b32 s%d, s2, 5" % sB)
    A("s_and_b32 s%d, s2, 31" % sCS)
    A("v_and_b32 v1, 3, v0")
    A("v_lshrrev_b32 v2, 2, v0")
    A("s_waitcnt lgkmcnt(0)")
    srd(A, sT, 8, WS_Y)
    srd(A, sY, 8, WS_Y + NFFN * 4096)
    srd(A, sX, 4, 2048)
    srd(A, sO, 6, 2048)
    A("s_lshl_b32 s%d, s%d, 18" % (sT0, sB))
    A("s_lshl_b32 s%d, s%d, 6" % (sT1, sCS))
    A("s_add_u32 s%d, s%d, s%d" % (sT0, sT0, sT1))
    A("v_lshlrev_b32 v3, 11, v2")
    A("v_lshl_add_u32 v3, v1, 4, v3")
    A("v_add_u32 v4, s%d, v3" % sT0)
    A("s_mov_b32 s48, 0x20000")
    A("buffer_load_dwordx4 v[8:11], v4, %s, 0 offen" % sr(sT, 4))
    A("buffer_load_dwordx4 v[12:15], v4, %s, s48 offen" % sr(sT, 4))
    A("v_and_b32 v5, 31, v2")
    A("v_lshlrev_b32 v5, 3, v5")
    A("s_lshl_b32 s%d, s%d, 10" % (sT0, sB))
    A("s_add_u32 s%d, s%d, 0x%x" % (sT0, sT0, WS_ML))
    A("v_add_u32 v5, s%d, v5" % sT0)
    for c in range(4):
        A("buffer_load_dwordx2 v[%d:%d], v5, %s, 0 offen offset:%d" % (16 + 2 * c, 17 + 2 * c, sr(sT, 4), 256 * c))
    A("s_lshl_b32 s%d, s%d, 11" % (sT0, sB))
    A("s_add_u32 s%d, s%d, s%d" % (sT0, sT0, sT1))
    A("s_add_u32 s%d, s%d, 0x%x" % (sT0, sT0, WS_Y))
    A("v_lshlrev_b32 v3, 12, v2")
    A("v_lshl_add_u32 v3, v1, 4, v3")
    A("v_add_u32 v4, s%d, v3" % sT0)
    for i in range(3):
        A("s_mov_b32 s48, 0x%x" % (i * 64 * 4096))
        A("buffer_load_dwordx4 v[%d:%d], v4, %s, s48 offen" % (24 + 4 * i, 27 + 4 * i, sr(sY, 4)))
    A("s_lshl_b32 s%d, s%d, 10" % (sT0, sB))
    A("s_lshl_b32 s%d, s%d, 5" % (sT1, sCS))
    A("s_add_u32 s%d, s%d, s%d" % (sT0, sT0, sT1))
    A("v_and_b32 v6, 15, v0")
    A("v_lshlrev_b32 v6, 1, v6")
    A("v_add_u32 v6, s%d, v6" % sT0)
    A("buffer_load_ushort v7, v6, %s, 0 offen" % sr(sX, 4))
    A("s_waitcnt vmcnt(4)")
    A("v_max3_f32 v36, v16, v18, v20")
    A("v_max_f32 v36, v36, v22")
    for c in range(4):
        A("v_sub_f32 v%d, v%d, v36" % (16 + 2 * c, 16 + 2 * c))
    for c in range(4):
        A("v_mul_f32 v%d, %s, v%d" % (16 + 2 * c, LOG2E, 16 + 2 * c))
    for c in range(4):
        A("v_exp_f32 v%d, v%d" % (16 + 2 * c, 16 + 2 * c))
    A("v_mul_f32 v36, v16, v17")
    A("v_fmac_f32 v36, v18, v19")
    A("v_fmac_f32 v36, v20, v21")
    A("v_fmac_f32 v36, v22, v23")
    A("v_rcp_f32 v37, v36")
    A("v_fma_f32 v38, -v36, v37, 1.0")
    A("v_fmac_f32 v37, v38, v37")
    A("v_cmp_gt_u32 vcc, 32, v2")
    A("v_cndmask_b32 v38, v18, v16, vcc")
    A("v_cndmask_b32 v39, v22, v20, vcc")
    A("v_mul_f32 v38, v38, v37")
    A("v_mul_f32 v39, v39, v37")
    for k in range(4):
        A("v_mul_f32 v%d, v38, v%d" % (8 + k, 8 + k))
    for k in range(4):
        A("v_fmac_f32 v%d, v39, v%d" % (8 + k, 12 + k))
    A("s_waitcnt vmcnt(1)")
    for k in range(4):
        A("v_add_f32 v%d, v%d, v%d" % (12 + k, 24 + k, 28 + k))
    for k in range(4):
        A("v_add_f32 v%d, v%d, v%d" % (12 + k, 12 + k, 32 + k))
    for k in range(8):
        A("v_add_f32_dpp v%d, v%d, v%d row_ror:4 %s" % (8 + k, 8 + k, 8 + k, DPPF))
    for k in range(8):
        A("v_add_f32_dpp v%d, v%d, v%d row_ror:8 %s" % (8 + k, 8 + k, 8 + k, DPPF))
    rows_merge8(A, [v(8 + i) for i in range(8)])
    A("v_and_b32 v16, 63, v0")
    A("v_lshrrev_b32 v17, 4, v16")
    A("v_and_b32 v18, 1, v17")
    A("v_lshlrev_b32 v18, 1, v18")
    A("v_lshrrev_b32 v17, 1, v17")
    A("v_or_b32 v18, v18, v17")
    A("v_lshl_add_u32 v18, v1, 2, v18")
    A("v_lshrrev_b32 v17, 6, v0")
    A("v_lshl_add_u32 v18, v17, 5, v18")
    A("v_lshlrev_b32 v18, 2, v18")
    A("ds_write_b32 v18, v8")
    A("ds_write_b32 v18, v12 offset:64")
    A("s_waitcnt lgkmcnt(0)")
    A("s_barrier")
    A("v_cmp_gt_u32 vcc, 16, v0")
    A("s_and_saveexec_b64 s[50:51], vcc")
    A("s_cbranch_execz K2_END")
    A("v_lshlrev_b32 v18, 2, v0")
    for w in range(4):
        A("ds_read_b32 v%d, v18 offset:%d" % (20 + w, 128 * w))
        A("ds_read_b32 v%d, v18 offset:%d" % (24 + w, 128 * w + 64))
    A("s_waitcnt lgkmcnt(0)")
    A("v_add_f32 v20, v20, v21")
    A("v_add_f32 v22, v22, v23")
    A("v_add_f32 v24, v24, v25")
    A("v_add_f32 v26, v26, v27")
    A("v_add_f32 v20, v20, v22")
    A("v_add_f32 v24, v24, v26")
    rne2(A, "v20", "v24", "v21")
    A("v_mul_f32 v25, 0xbfb8aa3b, v24")
    A("v_exp_f32 v25, v25")
    A("v_add_f32 v25, 1.0, v25")
    A("v_rcp_f32 v26, v25")
    A("v_mul_f32 v27, v24, v26")
    A("v_fma_f32 v28, -v27, v25, v24")
    A("v_fmac_f32 v27, v28, v26")
    rne1(A, "v27", "v21")
    A("v_mul_f32 v20, v20, v27")
    rne1(A, "v20", "v21")
    A("s_waitcnt vmcnt(0)")
    A("v_lshlrev_b32 v7, 16, v7")
    A("v_add_f32 v20, v20, v7")
    A("v_cvt_pk_bf16_f32 v20, v20, v20")
    A("buffer_store_short v20, v6, %s, 0 offen" % sr(sO, 4))
    A.label("K2_END")
    A("s_endpgm")
    return A.text()


def kd(name, vg, sg):
    return """.amdhsa_kernel %s
  .amdhsa_next_free_vgpr %d
  .amdhsa_next_free_sgpr %d
  .amdhsa_accum_offset %d
  .amdhsa_group_segment_fixed_size 0
  .amdhsa_kernarg_size 96
  .amdhsa_user_sgpr_count 2
  .amdhsa_user_sgpr_kernarg_segment_ptr 1
  .amdhsa_system_sgpr_workgroup_id_x 1
.end_amdhsa_kernel
""" % (name, vg, sg, (vg + 3) // 4 * 4)


def main():
    out = sys.argv[1]
    k1 = NAME + "_kernel"
    k2 = "combine_kernel"
    hdr = open("cdna_kernels/%s.s.ref" % NAME).read().split("; Override launch")[0]
    s = hdr
    s += "; @launch kernel=%s grid=(256,1,1) block=(1024,1,1) lds=%d\n" % (k1, L_TOTAL)
    s += "; @launch kernel=%s grid=(64,1,1) block=(256,1,1) lds=512\n" % k2
    s += '.amdgcn_target "amdgcn-amd-amdhsa--gfx950"\n.text\n'
    for nm, body in ((k1, gen_k1()), (k2, gen_k2())):
        s += ".globl %s\n.p2align 8\n.type %s,@function\n%s:\n" % (nm, nm, nm)
        s += body
    s += '.section .rodata,"a"\n.p2align 6\n'
    s += kd(k1, 128, 102)
    s += ".p2align 6\n"
    s += kd(k2, 40, 56)
    open(out, "w").write(s)


main()
```

```python
import sys
import os
sys.path.insert(0, os.path.dirname(os.path.abspath(__file__)))
from asmlib import Asm

NAME = "recurrent_scan__gqa_block_cached__geglu_ffn__decode"

CFG = dict(D=12, NT=1, INTERLEAVE=False, STAMP=0, PB=0, LB=0, NOFFN=0, NOWQ=0, NOWO=0, CPF=0, E=12, ROT=1, NOCOMP=0, EWO=1, PRIO=0, WNT=0, RA=1, RB=3, KNT=1, VNT=1)
for a in sys.argv[2:]:
    k, v = a.split("=")
    CFG[k] = int(v)
D = CFG["D"]
NT = ["", " nt", " sc1 nt", " sc0 sc1 nt", " sc0 sc1", " sc1", " sc0 nt"][CFG["NT"]]
INTERLEAVE = CFG["INTERLEAVE"]
WNT = " nt" if CFG["WNT"] else ""
STAMP = CFG["STAMP"]
PB = CFG["PB"]
LB = CFG["LB"]

LOG2E = "0x3fb8aa3b"
SCALE = "0x3db504f3"
HI = "0xffff0000"

WS_T = 0
WS_ML = 512 * 1024
WS_Y = 1024 * 1024
NFFN = 172

L_XN = 0
L_QP = 4096
L_QB = 12288
L_FP = 12544
L_ML = 13568
L_OP = 13824
L_TP = 22528
L_TOTAL = 55296


def v(n):
    return "v%d" % n


def vr(n, c):
    return "v[%d:%d]" % (n, n + c - 1)


def sr(n, c):
    return "s[%d:%d]" % (n, n + c - 1)


def srd(A, dst, ptr, nbytes):
    A("s_mov_b32 s%d, s%d" % (dst, ptr))
    A("s_and_b32 s%d, s%d, 0xffff" % (dst + 1, ptr + 1))
    if isinstance(nbytes, str):
        A("s_mov_b32 s%d, %s" % (dst + 2, nbytes))
    else:
        A("s_mov_b32 s%d, 0x%x" % (dst + 2, nbytes))
    A("s_mov_b32 s%d, 0x00020000" % (dst + 3))


DPPF = "row_mask:0xf bank_mask:0xf"


def row_allreduce(A, op, x):
    A("%s_dpp %s, %s, %s quad_perm:[1,0,3,2] %s" % (op, x, x, x, DPPF))
    A("%s_dpp %s, %s, %s quad_perm:[2,3,0,1] %s" % (op, x, x, x, DPPF))
    A("%s_dpp %s, %s, %s row_half_mirror %s" % (op, x, x, x, DPPF))
    A("%s_dpp %s, %s, %s row_mirror %s" % (op, x, x, x, DPPF))


def xrow_allreduce(A, op, x, t):
    A("v_mov_b32 %s, %s" % (t, x))
    A("v_permlane16_swap_b32 %s, %s" % (x, t))
    A("%s %s, %s, %s" % (op, x, x, t))
    A("v_mov_b32 %s, %s" % (t, x))
    A("v_permlane32_swap_b32 %s, %s" % (x, t))
    A("%s %s, %s, %s" % (op, x, x, t))


def rows_merge8(A, a):
    for i in range(0, 8, 2):
        A("v_permlane32_swap_b32 %s, %s" % (a[i], a[i + 1]))
    for i in range(0, 8, 2):
        A("v_add_f32 %s, %s, %s" % (a[i], a[i], a[i + 1]))
    A("v_permlane16_swap_b32 %s, %s" % (a[0], a[2]))
    A("v_permlane16_swap_b32 %s, %s" % (a[4], a[6]))
    A("v_add_f32 %s, %s, %s" % (a[0], a[0], a[2]))
    A("v_add_f32 %s, %s, %s" % (a[4], a[4], a[6]))


def rne2(A, a, b, t):
    A("v_cvt_pk_bf16_f32 %s, %s, %s" % (t, a, b))
    A("v_lshlrev_b32 %s, 16, %s" % (a, t))
    A("v_and_b32 %s, %s, %s" % (b, HI, t))


def rne1(A, a, t):
    A("v_cvt_pk_bf16_f32 %s, %s, %s" % (t, a, a))
    A("v_lshlrev_b32 %s, 16, %s" % (a, t))


def layernorm(A, X, vaddr, off):
    f = [v(32 + i) for i in range(8)]
    S, T, MEAN, R = "v40", "v41", "v42", "v43"
    for k in range(4):
        A("v_lshlrev_b32 %s, 16, v%d" % (f[2 * k], X + k))
        A("v_and_b32 %s, %s, v%d" % (f[2 * k + 1], HI, X + k))
    A("v_add_f32 %s, %s, %s" % (S, f[0], f[1]))
    A("v_add_f32 %s, %s, %s" % (T, f[2], f[3]))
    A("v_add_f32 %s, %s, %s" % (R, f[4], f[5]))
    A("v_add_f32 %s, %s, %s" % (MEAN, f[6], f[7]))
    A("v_add_f32 %s, %s, %s" % (S, S, T))
    A("v_add_f32 %s, %s, %s" % (R, R, MEAN))
    A("v_add_f32 %s, %s, %s" % (S, S, R))
    row_allreduce(A, "v_add_f32", S)
    xrow_allreduce(A, "v_add_f32", S, T)
    A("v_mul_f32 %s, 0x3b000000, %s" % (MEAN, S))
    for k in range(8):
        A("v_sub_f32 %s, %s, %s" % (R, f[k], MEAN))
        if k == 0:
            A("v_mul_f32 %s, %s, %s" % (S, R, R))
        else:
            A("v_fmac_f32 %s, %s, %s" % (S, R, R))
    row_allreduce(A, "v_add_f32", S)
    xrow_allreduce(A, "v_add_f32", S, T)
    A("v_mul_f32 %s, 0x3b000000, %s" % (S, S))
    rne2(A, MEAN, S, T)
    A("v_add_f32 %s, 0x3727c5ac, %s" % (S, S))
    rne1(A, S, T)
    A("v_sqrt_f32 %s, %s" % (S, S))
    rne1(A, S, T)
    A("v_rcp_f32 %s, %s" % (R, S))
    Q0, Q1 = "v44", "v45"
    for k in range(0, 8, 2):
        A("v_sub_f32 %s, %s, %s" % (f[k], f[k], MEAN))
        A("v_sub_f32 %s, %s, %s" % (f[k + 1], f[k + 1], MEAN))
        rne2(A, f[k], f[k + 1], T)
        A("v_mul_f32 %s, %s, %s" % (Q0, f[k], R))
        A("v_mul_f32 %s, %s, %s" % (Q1, f[k + 1], R))
        A("v_fma_f32 %s, -%s, %s, %s" % (f[k], Q0, S, f[k]))
        A("v_fma_f32 %s, -%s, %s, %s" % (f[k + 1], Q1, S, f[k + 1]))
        A("v_fma_f32 %s, %s, %s, %s" % (f[k], f[k], R, Q0))
        A("v_fma_f32 %s, %s, %s, %s" % (f[k + 1], f[k + 1], R, Q1))
        rne2(A, f[k], f[k + 1], T)
    A("ds_write_b128 %s, v[32:35] offset:%d" % (vaddr, off))
    A("ds_write_b128 %s, v[36:39] offset:%d" % (vaddr, off + 16))


def gen_k1():
    A = Asm()
    sK, sV, sWQ, sWO, sX, sF, sWD, sWS = 28, 32, 36, 40, 44, 48, 52, 56
    sWAVE, sH, sB, sC, sJ, sJV, sT0, sT1 = 60, 61, 62, 63, 64, 65, 66, 67
    sHH, sHL = 68, 84
    sOFF = 100
    sROT = 101
    vTID, vLANE, vKV, vA = "v0", "v1", "v2", "v3"
    Q = 4
    ACC = 8
    PL, PH = 16, 24
    AA = 32
    vC, vD = "v36", "v37"
    vDI = "v46"
    vG = "v47"
    WQ = 48
    RING = 80
    assert RING + 4 * D <= 128

    A("s_cmp_ge_u32 s2, 256")
    A("s_cbranch_scc1 K1_END")
    A("s_load_dwordx16 s[4:19], s[0:1], 0")
    A("s_load_dwordx8 s[20:27], s[0:1], 64")
    if CFG["CPF"]:
        A("s_getpc_b64 s[28:29]")
        A("v_lshlrev_b32 v1, 4, v0")
        A("global_load_dwordx4 v[124:127], v1, s[28:29]")
    A("v_and_b32 %s, 63, %s" % (vLANE, vTID))
    A("v_lshrrev_b32 v3, 6, %s" % vTID)
    A("v_readfirstlane_b32 s%d, v3" % sWAVE)
    A("s_and_b32 s%d, s2, 31" % sH)
    A("s_lshr_b32 s%d, s2, 7" % sB)
    A("s_bfe_u32 s%d, s2, 0x20005" % sC)
    A("s_and_b32 s%d, s2, 0xc0" % sJ)
    A("s_and_b32 s%d, s2, 7" % sT0)
    A("s_lshl_b32 s%d, s%d, 3" % (sT0, sT0))
    A("s_add_u32 s%d, s%d, s%d" % (sJ, sJ, sT0))
    A("s_bfe_u32 s%d, s2, 0x30003" % sT0)
    A("s_add_u32 s%d, s%d, s%d" % (sJ, sJ, sT0))
    A("s_cmp_lt_u32 s%d, %d" % (sJ, NFFN))
    A("s_cselect_b32 s%d, %d, 0" % (sJV, 0 if CFG["NOFFN"] else 1))
    A("v_lshrrev_b32 %s, 4, %s" % (vG, vLANE))
    A("v_and_b32 v38, 1, %s" % vG)
    A("v_lshlrev_b32 v38, 1, v38")
    A("v_lshrrev_b32 v39, 1, %s" % vG)
    A("v_or_b32 v38, v38, v39")
    A("v_and_b32 v39, 15, %s" % vLANE)
    A("v_lshl_add_u32 %s, v39, 3, v38" % vDI)
    A("s_waitcnt lgkmcnt(0)")
    srd(A, sX, 4, 2048)
    srd(A, sK, 6, 0x8000000)
    srd(A, sV, 8, 0x8000000)
    srd(A, sWQ, 10, 0 if CFG["NOWQ"] else 0x400000)
    srd(A, sWO, 12, 0 if CFG["NOWO"] else 0x400000)
    srd(A, sWD, 20, 1376 * 1024)
    srd(A, sWS, 26, 0x200000)
    A("s_cmp_lt_u32 s%d, 8" % sWAVE)
    A("s_cselect_b32 s%d, s16, s18" % sF)
    A("s_cselect_b32 s%d, s17, s19" % (sF + 1))
    A("s_and_b32 s%d, s%d, 0xffff" % (sF + 1, sF + 1))
    A("s_cmp_eq_u32 s%d, 1" % sJV)
    A("s_cselect_b32 s%d, 0x%x, 0" % (sF + 2, 512 * 2752))
    A("s_mov_b32 s%d, 0x00020000" % (sF + 3))

    nst = [0]
    def stamp(level=1):
        if (STAMP == 1 and level == 1) or (STAMP == 2 and level in (0, 2)) or (STAMP and level == 0) or (STAMP == 3 and level == 3):
            A("s_memrealtime s[%d:%d]" % (4 + 2 * nst[0], 5 + 2 * nst[0]))
            nst[0] += 1
    stamp(0)
    A("v_lshlrev_b32 %s, 4, %s" % (vA, vLANE))
    A("buffer_load_dwordx4 v[8:11], %s, %s, 0 offen" % (vA, sr(sX, 4)))
    A("buffer_load_dwordx4 v[12:15], %s, %s, 0 offen offset:1024" % (vA, sr(sX, 4)))
    if STAMP == 3:
        A("s_waitcnt vmcnt(0)")
        stamp(3)
    A("s_lshl_b32 s%d, s%d, 18" % (sT0, sWAVE))
    A("s_lshl_b32 s%d, s%d, 8" % (sT1, sH))
    A("s_add_u32 s%d, s%d, s%d" % (sT0, sT0, sT1))
    A("v_lshlrev_b32 v38, 13, %s" % vG)
    A("v_lshl_add_u32 v38, v39, 4, v38")
    A("v_add_u32 v38, s%d, v38" % sT0)
    for i in range(8):
        A("s_mov_b32 s%d, 0x%x" % (sOFF, i * 32768))
        A("buffer_load_dwordx4 %s, v38, %s, s%d offen%s" % (vr(WQ + 4 * i, 4), sr(sWQ, 4), sOFF, WNT))
    if STAMP == 3:
        A("s_waitcnt vmcnt(0)")
        stamp(3)
    A("s_and_b32 s%d, s%d, 7" % (sT0, sWAVE))
    A("s_lshl_b32 s%d, s%d, 6" % (sT0, sT0))
    A("v_add_u32 v38, s%d, %s" % (sT0, vLANE))
    A("s_movk_i32 s%d, 2752" % sT1)
    A("v_mul_lo_u32 v38, v38, s%d" % sT1)
    A("s_lshl_b32 s%d, s%d, 4" % (sT1, sJ))
    A("v_add_u32 v38, s%d, v38" % sT1)
    A("buffer_load_dwordx4 v[28:31], v38, %s, 0 offen%s" % (sr(sF, 4), WNT))
    if STAMP == 3:
        A("s_waitcnt vmcnt(0)")
        stamp(3)
    A("s_lshl_b32 s%d, s%d, 5" % (sT0, sB))
    A("s_add_u32 s%d, s%d, s%d" % (sT0, sT0, sH))
    A("s_lshl_b32 s%d, s%d, 21" % (sT0, sT0))
    A("s_lshl_b32 s%d, s%d, 19" % (sT1, sC))
    A("s_add_u32 s%d, s%d, s%d" % (sT0, sT0, sT1))
    if INTERLEAVE:
        A("s_lshl_b32 s%d, s%d, 10" % (sT1, sWAVE))
    else:
        A("s_lshl_b32 s%d, s%d, 15" % (sT1, sWAVE))
    A("s_add_u32 s%d, s%d, s%d" % (sT0, sT0, sT1))
    A("v_add_u32 %s, s%d, %s" % (vKV, sT0, vA))
    A("s_mul_i32 s%d, s%d, %d" % (sROT, sWAVE, CFG["RB"]))
    A("s_mul_i32 s%d, s2, %d" % (sT1, CFG["RA"]))
    A("s_add_u32 s%d, s%d, s%d" % (sROT, sROT, sT1))
    A("s_and_b32 s%d, s%d, 31" % (sROT, sROT))
    A("s_lshl_b32 s%d, s%d, 10" % (sROT, sROT))

    def issue(n):
        if n < 64:
            i = n & 31
            srdn = sK if n < 32 else sV
            dst = RING + 4 * (n % D)
            if INTERLEAVE:
                so, io = i * 16384, 0
            else:
                so, io = (i >> 2) * 4096, (i & 3) * 1024
            if CFG["ROT"]:
                A("buffer_load_dwordx4 %s, %s, %s, s%d offen%s" % (vr(dst, 4), vKV, sr(srdn, 4), sROT, (NT if CFG["KNT" if n < 32 else "VNT"] else "")))
                A("s_add_u32 s%d, s%d, 0x400" % (sROT, sROT))
                A("s_and_b32 s%d, s%d, 0x7fff" % (sROT, sROT))
            else:
                A("s_mov_b32 s%d, 0x%x" % (sOFF, so))
                A("buffer_load_dwordx4 %s, %s, %s, s%d offen offset:%d%s" % (vr(dst, 4), vKV, sr(srdn, 4), sOFF, io, NT))
        else:
            r = n - 64
            if r == 0:
                A("s_lshl_b32 s%d, s%d, 17" % (sT0, sH))
                A("s_lshl_b32 s%d, s%d, 13" % (sT1, sWAVE))
                A("s_add_u32 s%d, s%d, s%d" % (sT0, sT0, sT1))
                A("v_lshlrev_b32 %s, 4, %s" % (vA, vLANE))
                A("v_add_u32 %s, s%d, %s" % (vA, sT0, vA))
            A("s_mov_b32 s%d, 0x%x" % (sOFF, (r >> 2) * 4096))
            A("buffer_load_dwordx4 %s, %s, %s, s%d offen offset:%d%s" % (vr(WQ + 4 * r, 4), vA, sr(sWO, 4), sOFF, (r & 3) * 1024, WNT))

    E = min(CFG["E"], D)
    if PB:
        A("s_barrier")
    for n in range(E):
        issue(n)
    EWO = CFG["EWO"]
    NTOT = 64 if EWO else 72
    if STAMP == 3:
        A("s_waitcnt vmcnt(0)")
        stamp(3)

    A("s_waitcnt vmcnt(%d)" % (E + 1 + 8))
    stamp(2)
    A("v_lshlrev_b32 v3, 5, %s" % vLANE)
    layernorm(A, 8, "v3", L_XN)
    layernorm(A, 12, "v3", L_XN + 2048)
    A("s_waitcnt lgkmcnt(0)")

    stamp(2)
    A("s_and_b32 s%d, s%d, 7" % (sT0, sWAVE))
    A("s_lshl_b32 s%d, s%d, 8" % (sT0, sT0))
    A("v_lshlrev_b32 v3, 2, %s" % vLANE)
    A("v_add_u32 v3, s%d, v3" % sT0)
    A("ds_read_b32 v8, v3 offset:%d" % (L_XN))
    A("ds_read_b32 v9, v3 offset:%d" % (L_XN + 2048))
    A("s_waitcnt lgkmcnt(0)")
    A("v_lshrrev_b32 v10, 16, v8")
    A("v_lshrrev_b32 v11, 16, v9")
    A("s_waitcnt vmcnt(%d)" % E)
    FA = [v(12 + i) for i in range(16)]
    for b in range(2):
        for k in range(4):
            A("v_dot2_f32_bf16 %s, v%d, v%d, 0" % (FA[b * 8 + 2 * k], 28 + k, 10 + b))
            A("v_dot2_f32_bf16 %s, v%d, v%d, 0" % (FA[b * 8 + 2 * k + 1], 28 + k, 8 + b))
    for i in range(0, 16, 2):
        A("v_permlane32_swap_b32 %s, %s" % (FA[i], FA[i + 1]))
    for i in range(0, 16, 2):
        A("v_add_f32 %s, %s, %s" % (FA[i], FA[i], FA[i + 1]))
    for i in range(0, 16, 4):
        A("v_permlane16_swap_b32 %s, %s" % (FA[i], FA[i + 2]))
    for i in range(0, 16, 4):
        A("v_add_f32 %s, %s, %s" % (FA[i], FA[i], FA[i + 2]))
    S = [FA[0], FA[4], FA[8], FA[12]]
    U0, U1, Z = "v32", "v33", "v34"
    A("v_add_f32_dpp %s, %s, %s row_ror:8 row_mask:0xf bank_mask:0x3" % (U0, S[0], S[0]))
    A("v_add_f32_dpp %s, %s, %s row_ror:8 row_mask:0xf bank_mask:0xc" % (U0, S[1], S[1]))
    A("v_add_f32_dpp %s, %s, %s row_ror:8 row_mask:0xf bank_mask:0x3" % (U1, S[2], S[2]))
    A("v_add_f32_dpp %s, %s, %s row_ror:8 row_mask:0xf bank_mask:0xc" % (U1, S[3], S[3]))
    A("v_add_f32_dpp %s, %s, %s row_half_mirror row_mask:0xf bank_mask:0x5" % (Z, U0, U0))
    A("v_add_f32_dpp %s, %s, %s row_half_mirror row_mask:0xf bank_mask:0xa" % (Z, U1, U1))
    A("v_add_f32_dpp %s, %s, %s quad_perm:[1,0,3,2] %s" % (Z, Z, Z, DPPF))
    A("v_add_f32_dpp %s, %s, %s quad_perm:[2,3,0,1] %s" % (Z, Z, Z, DPPF))
    A("v_bfe_u32 v35, %s, 2, 1" % vLANE)
    A("v_bfe_u32 v38, %s, 3, 1" % vLANE)
    A("v_lshl_add_u32 v35, v35, 1, v38")
    A("v_and_b32 v38, 7, %s" % vDI)
    A("v_lshl_add_u32 v35, v35, 2, v38")
    A("s_lshl_b32 s%d, s%d, 6" % (sT0, sWAVE))
    A("v_lshlrev_b32 v35, 2, v35")
    A("v_add_u32 v35, s%d, v35" % sT0)
    A("ds_write_b32 v35, %s offset:%d" % (Z, L_FP))

    stamp(2)
    A("s_lshl_b32 s%d, s%d, 11" % (sT0, sB))
    A("s_lshl_b32 s%d, s%d, 7" % (sT1, sWAVE))
    A("s_add_u32 s%d, s%d, s%d" % (sT0, sT0, sT1))
    A("v_lshlrev_b32 v3, 2, %s" % vG)
    A("v_add_u32 v3, s%d, v3" % sT0)
    for i in range(8):
        A("ds_read_b32 v%d, v3 offset:%d" % (16 + i, L_XN + 16 * i))
    A("s_waitcnt lgkmcnt(0)")
    for i in range(8):
        A("v_lshrrev_b32 v%d, 16, v%d" % (24 + i, 16 + i))
    qa = [v(8 + i) for i in range(8)]
    for i in range(8):
        for k in range(4):
            c0 = "0" if i == 0 else qa[2 * k]
            c1 = "0" if i == 0 else qa[2 * k + 1]
            A("v_dot2_f32_bf16 %s, v%d, v%d, %s" % (qa[2 * k], WQ + 4 * i + k, 24 + i, c0))
            A("v_dot2_f32_bf16 %s, v%d, v%d, %s" % (qa[2 * k + 1], WQ + 4 * i + k, 16 + i, c1))
    rows_merge8(A, qa)
    A("s_lshl_b32 s%d, s%d, 9" % (sT0, sWAVE))
    A("v_lshlrev_b32 v3, 2, %s" % vDI)
    A("v_add_u32 v3, s%d, v3" % sT0)
    A("v_add_u32 v3, 0x%x, v3" % L_QP)
    A("ds_write2_b32 v3, %s, %s offset0:0 offset1:4" % (qa[0], qa[4]))
    A("s_waitcnt lgkmcnt(0)")
    A("s_barrier")
    stamp(2)
    A("v_and_b32 v38, 7, %s" % vLANE)
    A("v_lshrrev_b32 v39, 3, %s" % vLANE)
    A("v_lshlrev_b32 v3, 9, v39")
    A("v_lshl_add_u32 v3, v38, 2, v3")
    A("s_lshl_b32 s%d, s%d, 5" % (sT0, sWAVE))
    A("v_add_u32 v3, s%d, v3" % sT0)
    A("ds_read_b32 v8, v3 offset:%d" % L_QP)
    A("ds_read_b32 v9, v3 offset:%d" % (L_QP + 4096))
    A("s_waitcnt lgkmcnt(0)")
    A("v_add_f32 v8, v8, v9")
    A("v_add_f32_dpp v8, v8, v8 row_ror:8 %s" % DPPF)
    xrow_allreduce(A, "v_add_f32", "v8", "v9")
    A("v_cvt_pk_bf16_f32 v8, v8, v8")
    A("s_lshl_b32 s%d, s%d, 4" % (sT0, sWAVE))
    A("v_lshlrev_b32 v3, 1, v38")
    A("v_add_u32 v3, s%d, v3" % sT0)
    A("ds_write_b16 v3, v8 offset:%d" % L_QB)
    A("s_waitcnt lgkmcnt(0)")
    A("s_barrier")
    A("v_and_b32 v3, 15, %s" % vLANE)
    A("v_lshlrev_b32 v3, 4, v3")
    A("ds_read_b128 %s, v3 offset:%d" % (vr(Q, 4), L_QB))
    for n in range(E, D):
        issue(n)

    A("s_cmp_lg_u32 s%d, 0" % sWAVE)
    A("s_cbranch_scc1 K1_NOFFN")
    A("s_cmp_lg_u32 s%d, 1" % sJV)
    A("s_cbranch_scc1 K1_NOFFN")
    A("s_lshl_b32 s%d, s%d, 13" % (sT0, sJ))
    A("v_lshlrev_b32 v3, 4, %s" % vLANE)
    A("v_add_u32 v3, s%d, v3" % sT0)
    for f in range(8):
        A("s_mov_b32 s%d, 0x%x" % (sOFF, (f >> 2) * 4096))
        A("buffer_load_dwordx4 %s, v3, %s, s%d offen offset:%d%s" % (vr(WQ + 4 * f, 4), sr(sWD, 4), sOFF, (f & 3) * 1024, WNT))
    A("v_lshlrev_b32 v38, 2, %s" % vLANE)
    A("ds_read_b32 v8, v38 offset:%d" % (L_FP))
    A("ds_read_b32 v9, v38 offset:%d" % (L_FP + 256))
    A("ds_read_b32 v10, v38 offset:%d" % (L_FP + 512))
    A("ds_read_b32 v11, v38 offset:%d" % (L_FP + 768))
    A("s_waitcnt lgkmcnt(0)")
    A("v_add_f32 v8, v8, v9")
    A("v_add_f32 v10, v10, v11")
    xrow_allreduce(A, "v_add_f32", "v8", "v9")
    xrow_allreduce(A, "v_add_f32", "v10", "v11")
    rne2(A, "v8", "v10", "v9")
    A("v_mul_f32 v9, v8, v8")
    A("v_mov_b32 v11, 0x3f4c422a")
    A("v_fmac_f32 v11, 0x3d12220c, v9")
    A("v_mul_f32 v11, v11, v8")
    A("v_mul_f32 v11, 0xc038aa3b, v11")
    A("v_exp_f32 v11, v11")
    A("v_add_f32 v11, 1.0, v11")
    A("v_rcp_f32 v11, v11")
    A("v_mul_f32 v8, v8, v11")
    rne1(A, "v8", "v9")
    A("v_mul_f32 v8, v8, v10")
    rne1(A, "v8", "v9")
    for i in range(16):
        A("v_readlane_b32 s%d, v8, %d" % (sHH + i, i))
    for i in range(16):
        A("s_lshr_b32 s%d, s%d, 16" % (sHL + i, sHH + i))
    A("s_waitcnt vmcnt(0)")
    YA = [v(8 + i) for i in range(16)]
    for f in range(8):
        for k in range(4):
            for b in range(2):
                c0 = "0" if f == 0 else YA[b * 8 + 2 * k]
                c1 = "0" if f == 0 else YA[b * 8 + 2 * k + 1]
                A("v_dot2_f32_bf16 %s, v%d, s%d, %s" % (YA[b * 8 + 2 * k], WQ + 4 * f + k, sHL + b * 8 + f, c0))
                A("v_dot2_f32_bf16 %s, v%d, s%d, %s" % (YA[b * 8 + 2 * k + 1], WQ + 4 * f + k, sHH + b * 8 + f, c1))
    A("s_lshl_b32 s%d, s%d, 12" % (sT0, sJ))
    A("s_add_u32 s%d, s%d, 0x%x" % (sT0, sT0, WS_Y))
    A("v_lshlrev_b32 v3, 5, %s" % vLANE)
    A("v_add_u32 v3, s%d, v3" % sT0)
    A("buffer_store_dwordx4 v[8:11], v3, %s, 0 offen" % sr(sWS, 4))
    A("buffer_store_dwordx4 v[12:15], v3, %s, 0 offen offset:16" % sr(sWS, 4))
    A("buffer_store_dwordx4 v[16:19], v3, %s, 0 offen offset:2048" % sr(sWS, 4))
    A("buffer_store_dwordx4 v[20:23], v3, %s, 0 offen offset:2064" % sr(sWS, 4))
    A.label("K1_NOFFN")
    if EWO:
        for m in range(64, 72):
            issue(m)
    A("s_waitcnt lgkmcnt(0)")
    stamp()

    def waitfor(n):
        if CFG["PRIO"] == 1 and n % 16 == 0:
            A("s_setprio %d" % (3 - n // 16))
        if CFG["PRIO"] == 2 and n in (0, 40, 52, 60):
            A("s_setprio %d" % {0: 3, 40: 2, 52: 1, 60: 0}[n])
        if CFG["PRIO"] == 3 and n in (0, 8, 16, 24):
            A("s_setprio %d" % {0: 3, 8: 2, 16: 1, 24: 0}[n])
        outstanding_after = min(n + D - 1, NTOT - 1) - n
        if EWO and n < D:
            outstanding_after += 8
        A("s_waitcnt vmcnt(%d)" % outstanding_after)

    a = [v(AA + i) for i in range(4)]
    for I in range(8):
        for t in range(4):
            n = 4 * I + t
            if LB and n % LB == 0 and n > 0:
                A("s_barrier")
            waitfor(n)
            base = RING + 4 * (n % D)
            for k in range(4 if not CFG["NOCOMP"] else 1):
                c = "0" if k == 0 else a[t]
                A("v_dot2_f32_bf16 %s, v%d, v%d, %s" % (a[t], base + k, Q + k, c))
            if n + D < NTOT:
                issue(n + D)
        for t in range(4):
            A("v_add_f32_dpp %s, %s, %s quad_perm:[1,0,3,2] %s" % (a[t], a[t], a[t], DPPF))
        for t in range(4):
            A("v_add_f32_dpp %s, %s, %s quad_perm:[2,3,0,1] %s" % (a[t], a[t], a[t], DPPF))
        A("v_add_f32_dpp %s, %s, %s row_half_mirror row_mask:0xf bank_mask:0x5" % (vC, a[0], a[0]))
        A("v_add_f32_dpp %s, %s, %s row_half_mirror row_mask:0xf bank_mask:0xa" % (vC, a[1], a[1]))
        A("v_add_f32_dpp %s, %s, %s row_half_mirror row_mask:0xf bank_mask:0x5" % (vD, a[2], a[2]))
        A("v_add_f32_dpp %s, %s, %s row_half_mirror row_mask:0xf bank_mask:0xa" % (vD, a[3], a[3]))
        A("v_add_f32_dpp v%d, %s, %s row_ror:8 row_mask:0xf bank_mask:0x3" % (PL + I, vC, vC))
        A("v_add_f32_dpp v%d, %s, %s row_ror:8 row_mask:0xf bank_mask:0xc" % (PL + I, vD, vD))

    stamp()
    M = [v(PL + i) for i in range(8)]
    T = "v38"
    for i in range(0, 8, 2):
        rne2(A, M[i], M[i + 1], T)
        A("v_mul_f32 %s, %s, %s" % (M[i], SCALE, M[i]))
        A("v_mul_f32 %s, %s, %s" % (M[i + 1], SCALE, M[i + 1]))
        rne2(A, M[i], M[i + 1], T)
    vM, vL = "v40", "v41"
    A("v_max3_f32 %s, %s, %s, %s" % (vM, M[0], M[1], M[2]))
    A("v_max3_f32 %s, %s, %s, %s" % (vM, vM, M[3], M[4]))
    A("v_max3_f32 %s, %s, %s, %s" % (vM, vM, M[5], M[6]))
    A("v_max_f32 %s, %s, %s" % (vM, vM, M[7]))
    A("v_max_f32_dpp %s, %s, %s row_ror:4 %s" % (vM, vM, vM, DPPF))
    A("v_max_f32_dpp %s, %s, %s row_ror:8 %s" % (vM, vM, vM, DPPF))
    xrow_allreduce(A, "v_max_f32", vM, T)
    A("v_mul_f32 v39, %s, %s" % (LOG2E, vM))
    A("s_mov_b32 s%d, %s" % (sT0, LOG2E))
    for i in range(8):
        A("v_fma_f32 %s, %s, s%d, -v39" % (M[i], M[i], sT0))
    for i in range(8):
        A("v_exp_f32 %s, %s" % (M[i], M[i]))
    A("v_add_f32 %s, %s, %s" % (vL, M[0], M[1]))
    A("v_add_f32 %s, %s, %s" % (T, M[2], M[3]))
    A("v_add_f32 v39, %s, %s" % (M[4], M[5]))
    A("v_add_f32 v42, %s, %s" % (M[6], M[7]))
    A("v_add_f32 %s, %s, %s" % (vL, vL, T))
    A("v_add_f32 v39, v39, v42")
    A("v_add_f32 %s, %s, v39" % (vL, vL))
    A("v_add_f32_dpp %s, %s, %s row_ror:4 %s" % (vL, vL, vL, DPPF))
    A("v_add_f32_dpp %s, %s, %s row_ror:8 %s" % (vL, vL, vL, DPPF))
    xrow_allreduce(A, "v_add_f32", vL, T)
    for i in range(0, 8, 2):
        A("v_cvt_pk_bf16_f32 %s, %s, %s" % (T, M[i], M[i + 1]))
        A("v_lshlrev_b32 v%d, 16, %s" % (PH + i, T))
        A("v_and_b32 v%d, %s, %s" % (PH + i + 1, HI, T))
        A("v_and_b32 v%d, 0xffff, %s" % (PL + i, T))
        A("v_lshrrev_b32 v%d, 16, %s" % (PL + i + 1, T))
    acc = [v(ACC + i) for i in range(8)]
    for i in range(8):
        A("v_mov_b32 %s, 0" % acc[i])

    for i in range(32):
        n = 32 + i
        I, qd = i >> 2, i & 3
        if LB and n % LB == 0:
            A("s_barrier")
        waitfor(n)
        base = RING + 4 * (n % D)
        for k in range(4 if not CFG["NOCOMP"] else 0):
            A("v_dot2c_f32_bf16_dpp %s, v%d, v%d row_newbcast:%d %s" % (acc[2 * k], PL + I, base + k, 4 * qd, DPPF))
            A("v_dot2c_f32_bf16_dpp %s, v%d, v%d row_newbcast:%d %s" % (acc[2 * k + 1], PH + I, base + k, 4 * qd, DPPF))
        if n + D < NTOT:
            issue(n + D)

    for m in range(64 + D, NTOT):
        issue(m)
    stamp()
    rows_merge8(A, acc)
    A("s_lshl_b32 s%d, s%d, 9" % (sT0, sWAVE))
    A("v_lshlrev_b32 v3, 2, %s" % vDI)
    A("v_add_u32 v3, s%d, v3" % sT0)
    A("v_add_u32 v3, 0x%x, v3" % L_OP)
    A("ds_write2_b32 v3, %s, %s offset0:0 offset1:4" % (acc[0], acc[4]))
    A("s_lshl_b32 s%d, s%d, 3" % (sT0, sWAVE))
    A("v_mov_b32 v3, s%d" % sT0)
    A("ds_write_b64 v3, v[40:41] offset:%d" % L_ML)
    A("s_waitcnt lgkmcnt(0)")
    A("s_barrier")
    A("v_and_b32 v38, 7, %s" % vLANE)
    A("v_lshrrev_b32 v39, 3, %s" % vLANE)
    A("v_lshlrev_b32 v3, 3, v39")
    A("ds_read_b64 v[16:17], v3 offset:%d" % L_ML)
    A("ds_read_b64 v[18:19], v3 offset:%d" % (L_ML + 64))
    A("v_lshlrev_b32 v3, 9, v39")
    A("v_lshl_add_u32 v3, v38, 2, v3")
    A("s_lshl_b32 s%d, s%d, 5" % (sT0, sWAVE))
    A("v_add_u32 v3, s%d, v3" % sT0)
    A("ds_read_b32 v20, v3 offset:%d" % L_OP)
    A("ds_read_b32 v21, v3 offset:%d" % (L_OP + 4096))
    A("s_waitcnt lgkmcnt(0)")
    A("v_max_f32 v22, v16, v18")
    A("v_max_f32_dpp v22, v22, v22 row_ror:8 %s" % DPPF)
    xrow_allreduce(A, "v_max_f32", "v22", "v23")
    A("v_sub_f32 v16, v16, v22")
    A("v_sub_f32 v18, v18, v22")
    A("v_mul_f32 v16, %s, v16" % LOG2E)
    A("v_mul_f32 v18, %s, v18" % LOG2E)
    A("v_exp_f32 v16, v16")
    A("v_exp_f32 v18, v18")
    A("v_mul_f32 v24, v16, v20")
    A("v_mul_f32 v23, v16, v17")
    A("v_fmac_f32 v24, v18, v21")
    A("v_fmac_f32 v23, v18, v19")
    A("v_add_f32_dpp v24, v24, v24 row_ror:8 %s" % DPPF)
    A("v_add_f32_dpp v23, v23, v23 row_ror:8 %s" % DPPF)
    xrow_allreduce(A, "v_add_f32", "v24", "v25")
    xrow_allreduce(A, "v_add_f32", "v23", "v25")
    A("s_cmp_lg_u32 s%d, 0" % sWAVE)
    A("s_cbranch_scc1 K1_NOML")
    A("s_lshl_b32 s%d, s2, 3" % sT0)
    A("s_add_u32 s%d, s%d, 0x%x" % (sT0, sT0, WS_ML))
    A("v_mov_b32 v3, s%d" % sT0)
    A("buffer_store_dwordx2 v[22:23], v3, %s, 0 offen" % sr(sWS, 4))
    A.label("K1_NOML")
    A("s_waitcnt vmcnt(0)")
    for r in range(8):
        for k in range(4):
            A("v_lshlrev_b32 v26, 16, v%d" % (WQ + 4 * r + k))
            A("v_and_b32 v27, %s, v%d" % (HI, WQ + 4 * r + k))
            op = "v_mul_f32_dpp" if r == 0 else "v_fmac_f32_dpp"
            A("%s %s, v24, v26 row_newbcast:%d %s" % (op, acc[2 * k], r, DPPF))
            A("%s %s, v24, v27 row_newbcast:%d %s" % (op, acc[2 * k + 1], r, DPPF))
    A("s_lshl_b32 s%d, s%d, 11" % (sT0, sWAVE))
    A("v_lshlrev_b32 v3, 5, %s" % vLANE)
    A("v_add_u32 v3, s%d, v3" % sT0)
    A("ds_write_b128 v3, v[8:11] offset:%d" % L_TP)
    A("ds_write_b128 v3, v[12:15] offset:%d" % (L_TP + 16))
    A("s_waitcnt lgkmcnt(0)")
    A("s_barrier")
    if STAMP:
        stamp()
        A("s_waitcnt lgkmcnt(0)")
        A("s_lshl_b32 s%d, s2, 4" % sT0)
        A("s_add_u32 s%d, s%d, s%d" % (sT0, sT0, sWAVE))
        A("s_lshl_b32 s%d, s%d, 5" % (sT0, sT0))
        A("s_add_u32 s%d, s%d, 0x1c0000" % (sT0, sT0))
        A("v_mov_b32 v3, s%d" % sT0)
        for i in range(5):
            A("v_mov_b32 v%d, s%d" % (16 + i, 4 + 2 * i))
        A("buffer_store_dwordx4 v[16:19], v3, %s, 0 offen" % sr(sWS, 4))
        A("buffer_store_dword v20, v3, %s, 0 offen offset:16" % sr(sWS, 4))
    A("s_cmp_ge_u32 s%d, 8" % sWAVE)
    A("s_cbranch_scc1 K1_END")
    A("v_lshlrev_b32 v3, 2, %s" % vTID)
    for i in range(16):
        A("ds_read_b32 v%d, v3 offset:%d" % (16 + i, L_TP + 2048 * i))
    A("s_waitcnt lgkmcnt(0)")
    for i in range(8):
        A("v_add_f32 v%d, v%d, v%d" % (16 + i, 16 + i, 24 + i))
    for i in range(4):
        A("v_add_f32 v%d, v%d, v%d" % (16 + i, 16 + i, 20 + i))
    A("v_add_f32 v16, v16, v18")
    A("v_add_f32 v17, v17, v19")
    A("v_add_f32 v16, v16, v17")
    A("s_lshl_b32 s%d, s2, 11" % sT0)
    A("v_add_u32 v3, s%d, v3" % sT0)
    A("buffer_store_dword v16, v3, %s, 0 offen" % sr(sWS, 4))
    A.label("K1_END")
    A("s_endpgm")
    return A.text()


def gen_k2():
    A = Asm()
    sT, sY, sX, sO = 28, 32, 36, 40
    sB, sCS, sT0, sT1 = 44, 45, 46, 47
    A("s_cmp_ge_u32 s2, 64")
    A("s_cbranch_scc1 K2_END")
    A("s_load_dwordx2 s[4:5], s[0:1], 0")
    A("s_load_dwordx2 s[6:7], s[0:1], 72")
    A("s_load_dwordx2 s[8:9], s[0:1], 88")
    A("s_lshr_b32 s%d, s2, 5" % sB)
    A("s_and_b32 s%d, s2, 31" % sCS)
    A("v_and_b32 v1, 3, v0")
    A("v_lshrrev_b32 v2, 2, v0")
    A("s_waitcnt lgkmcnt(0)")
    srd(A, sT, 8, WS_Y)
    srd(A, sY, 8, WS_Y + NFFN * 4096)
    srd(A, sX, 4, 2048)
    srd(A, sO, 6, 2048)
    A("s_lshl_b32 s%d, s%d, 18" % (sT0, sB))
    A("s_lshl_b32 s%d, s%d, 6" % (sT1, sCS))
    A("s_add_u32 s%d, s%d, s%d" % (sT0, sT0, sT1))
    A("v_lshlrev_b32 v3, 11, v2")
    A("v_lshl_add_u32 v3, v1, 4, v3")
    A("v_add_u32 v4, s%d, v3" % sT0)
    A("s_mov_b32 s48, 0x20000")
    A("buffer_load_dwordx4 v[8:11], v4, %s, 0 offen" % sr(sT, 4))
    A("buffer_load_dwordx4 v[12:15], v4, %s, s48 offen" % sr(sT, 4))
    A("v_and_b32 v5, 31, v2")
    A("v_lshlrev_b32 v5, 3, v5")
    A("s_lshl_b32 s%d, s%d, 10" % (sT0, sB))
    A("s_add_u32 s%d, s%d, 0x%x" % (sT0, sT0, WS_ML))
    A("v_add_u32 v5, s%d, v5" % sT0)
    for c in range(4):
        A("buffer_load_dwordx2 v[%d:%d], v5, %s, 0 offen offset:%d" % (16 + 2 * c, 17 + 2 * c, sr(sT, 4), 256 * c))
    A("s_lshl_b32 s%d, s%d, 11" % (sT0, sB))
    A("s_add_u32 s%d, s%d, s%d" % (sT0, sT0, sT1))
    A("s_add_u32 s%d, s%d, 0x%x" % (sT0, sT0, WS_Y))
    A("v_lshlrev_b32 v3, 12, v2")
    A("v_lshl_add_u32 v3, v1, 4, v3")
    A("v_add_u32 v4, s%d, v3" % sT0)
    for i in range(3):
        A("s_mov_b32 s48, 0x%x" % (i * 64 * 4096))
        A("buffer_load_dwordx4 v[%d:%d], v4, %s, s48 offen" % (24 + 4 * i, 27 + 4 * i, sr(sY, 4)))
    A("s_lshl_b32 s%d, s%d, 10" % (sT0, sB))
    A("s_lshl_b32 s%d, s%d, 5" % (sT1, sCS))
    A("s_add_u32 s%d, s%d, s%d" % (sT0, sT0, sT1))
    A("v_and_b32 v6, 15, v0")
    A("v_lshlrev_b32 v6, 1, v6")
    A("v_add_u32 v6, s%d, v6" % sT0)
    A("buffer_load_ushort v7, v6, %s, 0 offen" % sr(sX, 4))
    A("s_waitcnt vmcnt(4)")
    A("v_max3_f32 v36, v16, v18, v20")
    A("v_max_f32 v36, v36, v22")
    for c in range(4):
        A("v_sub_f32 v%d, v%d, v36" % (16 + 2 * c, 16 + 2 * c))
    for c in range(4):
        A("v_mul_f32 v%d, %s, v%d" % (16 + 2 * c, LOG2E, 16 + 2 * c))
    for c in range(4):
        A("v_exp_f32 v%d, v%d" % (16 + 2 * c, 16 + 2 * c))
    A("v_mul_f32 v36, v16, v17")
    A("v_fmac_f32 v36, v18, v19")
    A("v_fmac_f32 v36, v20, v21")
    A("v_fmac_f32 v36, v22, v23")
    A("v_rcp_f32 v37, v36")
    A("v_fma_f32 v38, -v36, v37, 1.0")
    A("v_fmac_f32 v37, v38, v37")
    A("v_cmp_gt_u32 vcc, 32, v2")
    A("v_cndmask_b32 v38, v18, v16, vcc")
    A("v_cndmask_b32 v39, v22, v20, vcc")
    A("v_mul_f32 v38, v38, v37")
    A("v_mul_f32 v39, v39, v37")
    for k in range(4):
        A("v_mul_f32 v%d, v38, v%d" % (8 + k, 8 + k))
    for k in range(4):
        A("v_fmac_f32 v%d, v39, v%d" % (8 + k, 12 + k))
    A("s_waitcnt vmcnt(1)")
    for k in range(4):
        A("v_add_f32 v%d, v%d, v%d" % (12 + k, 24 + k, 28 + k))
    for k in range(4):
        A("v_add_f32 v%d, v%d, v%d" % (12 + k, 12 + k, 32 + k))
    for k in range(8):
        A("v_add_f32_dpp v%d, v%d, v%d row_ror:4 %s" % (8 + k, 8 + k, 8 + k, DPPF))
    for k in range(8):
        A("v_add_f32_dpp v%d, v%d, v%d row_ror:8 %s" % (8 + k, 8 + k, 8 + k, DPPF))
    rows_merge8(A, [v(8 + i) for i in range(8)])
    A("v_and_b32 v16, 63, v0")
    A("v_lshrrev_b32 v17, 4, v16")
    A("v_and_b32 v18, 1, v17")
    A("v_lshlrev_b32 v18, 1, v18")
    A("v_lshrrev_b32 v17, 1, v17")
    A("v_or_b32 v18, v18, v17")
    A("v_lshl_add_u32 v18, v1, 2, v18")
    A("v_lshrrev_b32 v17, 6, v0")
    A("v_lshl_add_u32 v18, v17, 5, v18")
    A("v_lshlrev_b32 v18, 2, v18")
    A("ds_write_b32 v18, v8")
    A("ds_write_b32 v18, v12 offset:64")
    A("s_waitcnt lgkmcnt(0)")
    A("s_barrier")
    A("v_cmp_gt_u32 vcc, 16, v0")
    A("s_and_saveexec_b64 s[50:51], vcc")
    A("s_cbranch_execz K2_END")
    A("v_lshlrev_b32 v18, 2, v0")
    for w in range(4):
        A("ds_read_b32 v%d, v18 offset:%d" % (20 + w, 128 * w))
        A("ds_read_b32 v%d, v18 offset:%d" % (24 + w, 128 * w + 64))
    A("s_waitcnt lgkmcnt(0)")
    A("v_add_f32 v20, v20, v21")
    A("v_add_f32 v22, v22, v23")
    A("v_add_f32 v24, v24, v25")
    A("v_add_f32 v26, v26, v27")
    A("v_add_f32 v20, v20, v22")
    A("v_add_f32 v24, v24, v26")
    rne2(A, "v20", "v24", "v21")
    A("v_mul_f32 v25, 0xbfb8aa3b, v24")
    A("v_exp_f32 v25, v25")
    A("v_add_f32 v25, 1.0, v25")
    A("v_rcp_f32 v26, v25")
    A("v_mul_f32 v27, v24, v26")
    A("v_fma_f32 v28, -v27, v25, v24")
    A("v_fmac_f32 v27, v28, v26")
    rne1(A, "v27", "v21")
    A("v_mul_f32 v20, v20, v27")
    rne1(A, "v20", "v21")
    A("s_waitcnt vmcnt(0)")
    A("v_lshlrev_b32 v7, 16, v7")
    A("v_add_f32 v20, v20, v7")
    A("v_cvt_pk_bf16_f32 v20, v20, v20")
    A("buffer_store_short v20, v6, %s, 0 offen" % sr(sO, 4))
    A.label("K2_END")
    A("s_endpgm")
    return A.text()


def kd(name, vg, sg):
    return """.amdhsa_kernel %s
  .amdhsa_next_free_vgpr %d
  .amdhsa_next_free_sgpr %d
  .amdhsa_accum_offset %d
  .amdhsa_group_segment_fixed_size 0
  .amdhsa_kernarg_size 96
  .amdhsa_user_sgpr_count 2
  .amdhsa_user_sgpr_kernarg_segment_ptr 1
  .amdhsa_system_sgpr_workgroup_id_x 1
.end_amdhsa_kernel
""" % (name, vg, sg, (vg + 3) // 4 * 4)


def main():
    out = sys.argv[1]
    k1 = NAME + "_kernel"
    k2 = "combine_kernel"
    hdr = open("cdna_kernels/%s.s.ref" % NAME).read().split("; Override launch")[0]
    s = hdr
    s += "; @launch kernel=%s grid=(256,1,1) block=(1024,1,1) lds=%d\n" % (k1, L_TOTAL)
    s += "; @launch kernel=%s grid=(64,1,1) block=(256,1,1) lds=512\n" % k2
    s += '.amdgcn_target "amdgcn-amd-amdhsa--gfx950"\n.text\n'
    for nm, body in ((k1, gen_k1()), (k2, gen_k2())):
        s += ".globl %s\n.p2align 8\n.type %s,@function\n%s:\n" % (nm, nm, nm)
        s += body
    s += '.section .rodata,"a"\n.p2align 6\n'
    s += kd(k1, 128, 102)
    s += ".p2align 6\n"
    s += kd(k2, 40, 56)
    open(out, "w").write(s)


main()
```

```python
import sys
import os
sys.path.insert(0, os.path.dirname(os.path.abspath(__file__)))
from asmlib import Asm

NAME = "recurrent_scan__gqa_block_cached__geglu_ffn__decode"

CFG = dict(D=12, NT=1, INTERLEAVE=False, STAMP=0, PB=0, LB=0, NOFFN=0, NOWQ=0, NOWO=0, CPF=0, E=8, ROT=1, NOCOMP=0, EWO=1, PRIO=0, WNT=0, RA=1, RB=3, KNT=1, VNT=1, TW=0)
for a in sys.argv[2:]:
    k, v = a.split("=")
    CFG[k] = int(v)
D = CFG["D"]
NT = ["", " nt", " sc1 nt", " sc0 sc1 nt", " sc0 sc1", " sc1", " sc0 nt"][CFG["NT"]]
INTERLEAVE = CFG["INTERLEAVE"]
WNT = " nt" if CFG["WNT"] else ""
STAMP = CFG["STAMP"]
PB = CFG["PB"]
LB = CFG["LB"]

LOG2E = "0x3fb8aa3b"
SCALE = "0x3db504f3"
HI = "0xffff0000"

WS_T = 0
WS_ML = 512 * 1024
WS_Y = 1024 * 1024
NFFN = 172

L_XN = 0
L_QP = 4096
L_QB = 12288
L_FP = 12544
L_ML = 13568
L_OP = 13824
L_TP = 22528
L_TOTAL = 55296


def v(n):
    return "v%d" % n


def vr(n, c):
    return "v[%d:%d]" % (n, n + c - 1)


def sr(n, c):
    return "s[%d:%d]" % (n, n + c - 1)


def srd(A, dst, ptr, nbytes):
    A("s_mov_b32 s%d, s%d" % (dst, ptr))
    A("s_and_b32 s%d, s%d, 0xffff" % (dst + 1, ptr + 1))
    if isinstance(nbytes, str):
        A("s_mov_b32 s%d, %s" % (dst + 2, nbytes))
    else:
        A("s_mov_b32 s%d, 0x%x" % (dst + 2, nbytes))
    A("s_mov_b32 s%d, 0x00020000" % (dst + 3))


DPPF = "row_mask:0xf bank_mask:0xf"


def row_allreduce(A, op, x):
    A("%s_dpp %s, %s, %s quad_perm:[1,0,3,2] %s" % (op, x, x, x, DPPF))
    A("%s_dpp %s, %s, %s quad_perm:[2,3,0,1] %s" % (op, x, x, x, DPPF))
    A("%s_dpp %s, %s, %s row_half_mirror %s" % (op, x, x, x, DPPF))
    A("%s_dpp %s, %s, %s row_mirror %s" % (op, x, x, x, DPPF))


def xrow_allreduce(A, op, x, t):
    A("v_mov_b32 %s, %s" % (t, x))
    A("v_permlane16_swap_b32 %s, %s" % (x, t))
    A("%s %s, %s, %s" % (op, x, x, t))
    A("v_mov_b32 %s, %s" % (t, x))
    A("v_permlane32_swap_b32 %s, %s" % (x, t))
    A("%s %s, %s, %s" % (op, x, x, t))


def rows_merge8(A, a):
    for i in range(0, 8, 2):
        A("v_permlane32_swap_b32 %s, %s" % (a[i], a[i + 1]))
    for i in range(0, 8, 2):
        A("v_add_f32 %s, %s, %s" % (a[i], a[i], a[i + 1]))
    A("v_permlane16_swap_b32 %s, %s" % (a[0], a[2]))
    A("v_permlane16_swap_b32 %s, %s" % (a[4], a[6]))
    A("v_add_f32 %s, %s, %s" % (a[0], a[0], a[2]))
    A("v_add_f32 %s, %s, %s" % (a[4], a[4], a[6]))


def rne2(A, a, b, t):
    A("v_cvt_pk_bf16_f32 %s, %s, %s" % (t, a, b))
    A("v_lshlrev_b32 %s, 16, %s" % (a, t))
    A("v_and_b32 %s, %s, %s" % (b, HI, t))


def rne1(A, a, t):
    A("v_cvt_pk_bf16_f32 %s, %s, %s" % (t, a, a))
    A("v_lshlrev_b32 %s, 16, %s" % (a, t))


def layernorm(A, X, vaddr, off):
    f = [v(32 + i) for i in range(8)]
    S, T, MEAN, R = "v40", "v41", "v42", "v43"
    for k in range(4):
        A("v_lshlrev_b32 %s, 16, v%d" % (f[2 * k], X + k))
        A("v_and_b32 %s, %s, v%d" % (f[2 * k + 1], HI, X + k))
    A("v_add_f32 %s, %s, %s" % (S, f[0], f[1]))
    A("v_add_f32 %s, %s, %s" % (T, f[2], f[3]))
    A("v_add_f32 %s, %s, %s" % (R, f[4], f[5]))
    A("v_add_f32 %s, %s, %s" % (MEAN, f[6], f[7]))
    A("v_add_f32 %s, %s, %s" % (S, S, T))
    A("v_add_f32 %s, %s, %s" % (R, R, MEAN))
    A("v_add_f32 %s, %s, %s" % (S, S, R))
    row_allreduce(A, "v_add_f32", S)
    xrow_allreduce(A, "v_add_f32", S, T)
    A("v_mul_f32 %s, 0x3b000000, %s" % (MEAN, S))
    for k in range(8):
        A("v_sub_f32 %s, %s, %s" % (R, f[k], MEAN))
        if k == 0:
            A("v_mul_f32 %s, %s, %s" % (S, R, R))
        else:
            A("v_fmac_f32 %s, %s, %s" % (S, R, R))
    row_allreduce(A, "v_add_f32", S)
    xrow_allreduce(A, "v_add_f32", S, T)
    A("v_mul_f32 %s, 0x3b000000, %s" % (S, S))
    rne2(A, MEAN, S, T)
    A("v_add_f32 %s, 0x3727c5ac, %s" % (S, S))
    rne1(A, S, T)
    A("v_sqrt_f32 %s, %s" % (S, S))
    rne1(A, S, T)
    A("v_rcp_f32 %s, %s" % (R, S))
    Q0, Q1 = "v44", "v45"
    for k in range(0, 8, 2):
        A("v_sub_f32 %s, %s, %s" % (f[k], f[k], MEAN))
        A("v_sub_f32 %s, %s, %s" % (f[k + 1], f[k + 1], MEAN))
        rne2(A, f[k], f[k + 1], T)
        A("v_mul_f32 %s, %s, %s" % (Q0, f[k], R))
        A("v_mul_f32 %s, %s, %s" % (Q1, f[k + 1], R))
        A("v_fma_f32 %s, -%s, %s, %s" % (f[k], Q0, S, f[k]))
        A("v_fma_f32 %s, -%s, %s, %s" % (f[k + 1], Q1, S, f[k + 1]))
        A("v_fma_f32 %s, %s, %s, %s" % (f[k], f[k], R, Q0))
        A("v_fma_f32 %s, %s, %s, %s" % (f[k + 1], f[k + 1], R, Q1))
        rne2(A, f[k], f[k + 1], T)
    A("ds_write_b128 %s, v[32:35] offset:%d" % (vaddr, off))
    A("ds_write_b128 %s, v[36:39] offset:%d" % (vaddr, off + 16))


def gen_k1():
    A = Asm()
    sK, sV, sWQ, sWO, sX, sF, sWD, sWS = 28, 32, 36, 40, 44, 48, 52, 56
    sWAVE, sH, sB, sC, sJ, sJV, sT0, sT1 = 60, 61, 62, 63, 64, 65, 66, 67
    sHH, sHL = 68, 84
    sOFF = 100
    sROT = 101
    vTID, vLANE, vKV, vA = "v0", "v1", "v2", "v3"
    Q = 4
    ACC = 8
    PL, PH = 16, 24
    AA = 32
    vC, vD = "v36", "v37"
    vDI = "v46"
    vG = "v47"
    WQ = 48
    RING = 80
    assert RING + 4 * D <= 128

    A("s_cmp_ge_u32 s2, 256")
    A("s_cbranch_scc1 K1_END")
    A("s_load_dwordx16 s[4:19], s[0:1], 0")
    A("s_load_dwordx8 s[20:27], s[0:1], 64")
    if CFG["CPF"]:
        A("s_getpc_b64 s[28:29]")
        A("v_lshlrev_b32 v1, 4, v0")
        A("global_load_dwordx4 v[124:127], v1, s[28:29]")
    A("v_and_b32 %s, 63, %s" % (vLANE, vTID))
    A("v_lshrrev_b32 v3, 6, %s" % vTID)
    A("v_readfirstlane_b32 s%d, v3" % sWAVE)
    A("s_and_b32 s%d, s2, 31" % sH)
    A("s_lshr_b32 s%d, s2, 7" % sB)
    A("s_bfe_u32 s%d, s2, 0x20005" % sC)
    A("s_and_b32 s%d, s2, 0xc0" % sJ)
    A("s_and_b32 s%d, s2, 7" % sT0)
    A("s_lshl_b32 s%d, s%d, 3" % (sT0, sT0))
    A("s_add_u32 s%d, s%d, s%d" % (sJ, sJ, sT0))
    A("s_bfe_u32 s%d, s2, 0x30003" % sT0)
    A("s_add_u32 s%d, s%d, s%d" % (sJ, sJ, sT0))
    A("s_cmp_lt_u32 s%d, %d" % (sJ, NFFN))
    A("s_cselect_b32 s%d, %d, 0" % (sJV, 0 if CFG["NOFFN"] else 1))
    A("v_lshrrev_b32 %s, 4, %s" % (vG, vLANE))
    A("v_and_b32 v38, 1, %s" % vG)
    A("v_lshlrev_b32 v38, 1, v38")
    A("v_lshrrev_b32 v39, 1, %s" % vG)
    A("v_or_b32 v38, v38, v39")
    A("v_and_b32 v39, 15, %s" % vLANE)
    A("v_lshl_add_u32 %s, v39, 3, v38" % vDI)
    A("s_waitcnt lgkmcnt(0)")
    srd(A, sX, 4, 2048)
    srd(A, sK, 6, 0x8000000)
    srd(A, sV, 8, 0x8000000)
    srd(A, sWQ, 10, 0 if CFG["NOWQ"] else 0x400000)
    srd(A, sWO, 12, 0 if CFG["NOWO"] else 0x400000)
    srd(A, sWD, 20, 1376 * 1024)
    srd(A, sWS, 26, 0x200000)
    A("s_cmp_lt_u32 s%d, 8" % sWAVE)
    A("s_cselect_b32 s%d, s16, s18" % sF)
    A("s_cselect_b32 s%d, s17, s19" % (sF + 1))
    A("s_and_b32 s%d, s%d, 0xffff" % (sF + 1, sF + 1))
    A("s_cmp_eq_u32 s%d, 1" % sJV)
    A("s_cselect_b32 s%d, 0x%x, 0" % (sF + 2, 512 * 2752))
    A("s_mov_b32 s%d, 0x00020000" % (sF + 3))

    nst = [0]
    def stamp(level=1):
        if (STAMP == 1 and level == 1) or (STAMP == 2 and level in (0, 2)) or (STAMP and level == 0) or (STAMP == 3 and level == 3):
            A("s_memrealtime s[%d:%d]" % (4 + 2 * nst[0], 5 + 2 * nst[0]))
            nst[0] += 1
    stamp(0)
    A("v_lshlrev_b32 %s, 4, %s" % (vA, vLANE))
    A("buffer_load_dwordx4 v[8:11], %s, %s, 0 offen" % (vA, sr(sX, 4)))
    A("buffer_load_dwordx4 v[12:15], %s, %s, 0 offen offset:1024" % (vA, sr(sX, 4)))
    if STAMP == 3:
        A("s_waitcnt vmcnt(0)")
        stamp(3)
    A("s_lshl_b32 s%d, s%d, 18" % (sT0, sWAVE))
    A("s_lshl_b32 s%d, s%d, 8" % (sT1, sH))
    A("s_add_u32 s%d, s%d, s%d" % (sT0, sT0, sT1))
    A("v_lshlrev_b32 v38, 13, %s" % vG)
    A("v_lshl_add_u32 v38, v39, 4, v38")
    A("v_add_u32 v38, s%d, v38" % sT0)
    for i in range(8):
        A("s_mov_b32 s%d, 0x%x" % (sOFF, i * 32768))
        A("buffer_load_dwordx4 %s, v38, %s, s%d offen%s" % (vr(WQ + 4 * i, 4), sr(sWQ, 4), sOFF, WNT))
    if STAMP == 3:
        A("s_waitcnt vmcnt(0)")
        stamp(3)
    A("s_and_b32 s%d, s%d, 7" % (sT0, sWAVE))
    A("s_lshl_b32 s%d, s%d, 6" % (sT0, sT0))
    A("v_add_u32 v38, s%d, %s" % (sT0, vLANE))
    A("s_movk_i32 s%d, 2752" % sT1)
    A("v_mul_lo_u32 v38, v38, s%d" % sT1)
    A("s_lshl_b32 s%d, s%d, 4" % (sT1, sJ))
    A("v_add_u32 v38, s%d, v38" % sT1)
    A("buffer_load_dwordx4 v[28:31], v38, %s, 0 offen%s" % (sr(sF, 4), WNT))
    if STAMP == 3:
        A("s_waitcnt vmcnt(0)")
        stamp(3)
    A("s_lshl_b32 s%d, s%d, 5" % (sT0, sB))
    A("s_add_u32 s%d, s%d, s%d" % (sT0, sT0, sH))
    A("s_lshl_b32 s%d, s%d, 21" % (sT0, sT0))
    A("s_lshl_b32 s%d, s%d, 19" % (sT1, sC))
    A("s_add_u32 s%d, s%d, s%d" % (sT0, sT0, sT1))
    if INTERLEAVE:
        A("s_lshl_b32 s%d, s%d, 10" % (sT1, sWAVE))
    else:
        A("s_lshl_b32 s%d, s%d, 15" % (sT1, sWAVE))
    A("s_add_u32 s%d, s%d, s%d" % (sT0, sT0, sT1))
    A("v_add_u32 %s, s%d, %s" % (vKV, sT0, vA))
    A("s_mul_i32 s%d, s%d, %d" % (sROT, sWAVE, CFG["RB"]))
    A("s_mul_i32 s%d, s2, %d" % (sT1, CFG["RA"]))
    A("s_add_u32 s%d, s%d, s%d" % (sROT, sROT, sT1))
    A("s_and_b32 s%d, s%d, 31" % (sROT, sROT))
    A("s_lshl_b32 s%d, s%d, 10" % (sROT, sROT))

    def issue(n):
        if n < 64:
            i = n & 31
            srdn = sK if n < 32 else sV
            dst = RING + 4 * (n % D)
            if INTERLEAVE:
                so, io = i * 16384, 0
            else:
                so, io = (i >> 2) * 4096, (i & 3) * 1024
            if CFG["ROT"]:
                A("buffer_load_dwordx4 %s, %s, %s, s%d offen%s" % (vr(dst, 4), vKV, sr(srdn, 4), sROT, (NT if CFG["KNT" if n < 32 else "VNT"] else "")))
                A("s_add_u32 s%d, s%d, 0x400" % (sROT, sROT))
                A("s_and_b32 s%d, s%d, 0x7fff" % (sROT, sROT))
            else:
                A("s_mov_b32 s%d, 0x%x" % (sOFF, so))
                A("buffer_load_dwordx4 %s, %s, %s, s%d offen offset:%d%s" % (vr(dst, 4), vKV, sr(srdn, 4), sOFF, io, NT))
        else:
            r = n - 64
            if r == 0:
                A("s_lshl_b32 s%d, s%d, 17" % (sT0, sH))
                A("s_lshl_b32 s%d, s%d, 13" % (sT1, sWAVE))
                A("s_add_u32 s%d, s%d, s%d" % (sT0, sT0, sT1))
                A("v_lshlrev_b32 %s, 4, %s" % (vA, vLANE))
                A("v_add_u32 %s, s%d, %s" % (vA, sT0, vA))
            A("s_mov_b32 s%d, 0x%x" % (sOFF, (r >> 2) * 4096))
            A("buffer_load_dwordx4 %s, %s, %s, s%d offen offset:%d%s" % (vr(WQ + 4 * r, 4), vA, sr(sWO, 4), sOFF, (r & 3) * 1024, WNT))

    E = min(CFG["E"], D)
    TW = CFG["TW"]
    if TW:
        A("buffer_load_dword v16, %s, %s, 0 offen nt" % (vKV, sr(sV, 4)))
        A("s_lshl_b32 s%d, s2, 11" % sT0)
        A("v_mov_b32 v17, s%d" % sT0)
        A("buffer_load_dword v17, v17, %s, 0 offen" % sr(sWS, 4))
        A("s_lshl_b32 s%d, s%d, 17" % (sT0, sH))
        A("v_mov_b32 v18, s%d" % sT0)
        A("buffer_load_dword v18, v18, %s, 0 offen" % sr(sWO, 4))
    if PB:
        A("s_barrier")
    for n in range(E):
        issue(n)
    EWO = CFG["EWO"]
    NTOT = 64 if EWO else 72
    if STAMP == 3:
        A("s_waitcnt vmcnt(0)")
        stamp(3)

    A("s_waitcnt vmcnt(%d)" % (E + 1 + 8 + 3 * TW))
    stamp(2)
    A("v_lshlrev_b32 v3, 5, %s" % vLANE)
    layernorm(A, 8, "v3", L_XN)
    layernorm(A, 12, "v3", L_XN + 2048)
    A("s_waitcnt lgkmcnt(0)")

    stamp(2)
    A("s_and_b32 s%d, s%d, 7" % (sT0, sWAVE))
    A("s_lshl_b32 s%d, s%d, 8" % (sT0, sT0))
    A("v_lshlrev_b32 v3, 2, %s" % vLANE)
    A("v_add_u32 v3, s%d, v3" % sT0)
    A("ds_read_b32 v8, v3 offset:%d" % (L_XN))
    A("ds_read_b32 v9, v3 offset:%d" % (L_XN + 2048))
    A("s_waitcnt lgkmcnt(0)")
    A("v_lshrrev_b32 v10, 16, v8")
    A("v_lshrrev_b32 v11, 16, v9")
    A("s_waitcnt vmcnt(%d)" % E)
    FA = [v(12 + i) for i in range(16)]
    for b in range(2):
        for k in range(4):
            A("v_dot2_f32_bf16 %s, v%d, v%d, 0" % (FA[b * 8 + 2 * k], 28 + k, 10 + b))
            A("v_dot2_f32_bf16 %s, v%d, v%d, 0" % (FA[b * 8 + 2 * k + 1], 28 + k, 8 + b))
    for i in range(0, 16, 2):
        A("v_permlane32_swap_b32 %s, %s" % (FA[i], FA[i + 1]))
    for i in range(0, 16, 2):
        A("v_add_f32 %s, %s, %s" % (FA[i], FA[i], FA[i + 1]))
    for i in range(0, 16, 4):
        A("v_permlane16_swap_b32 %s, %s" % (FA[i], FA[i + 2]))
    for i in range(0, 16, 4):
        A("v_add_f32 %s, %s, %s" % (FA[i], FA[i], FA[i + 2]))
    S = [FA[0], FA[4], FA[8], FA[12]]
    U0, U1, Z = "v32", "v33", "v34"
    A("v_add_f32_dpp %s, %s, %s row_ror:8 row_mask:0xf bank_mask:0x3" % (U0, S[0], S[0]))
    A("v_add_f32_dpp %s, %s, %s row_ror:8 row_mask:0xf bank_mask:0xc" % (U0, S[1], S[1]))
    A("v_add_f32_dpp %s, %s, %s row_ror:8 row_mask:0xf bank_mask:0x3" % (U1, S[2], S[2]))
    A("v_add_f32_dpp %s, %s, %s row_ror:8 row_mask:0xf bank_mask:0xc" % (U1, S[3], S[3]))
    A("v_add_f32_dpp %s, %s, %s row_half_mirror row_mask:0xf bank_mask:0x5" % (Z, U0, U0))
    A("v_add_f32_dpp %s, %s, %s row_half_mirror row_mask:0xf bank_mask:0xa" % (Z, U1, U1))
    A("v_add_f32_dpp %s, %s, %s quad_perm:[1,0,3,2] %s" % (Z, Z, Z, DPPF))
    A("v_add_f32_dpp %s, %s, %s quad_perm:[2,3,0,1] %s" % (Z, Z, Z, DPPF))
    A("v_bfe_u32 v35, %s, 2, 1" % vLANE)
    A("v_bfe_u32 v38, %s, 3, 1" % vLANE)
    A("v_lshl_add_u32 v35, v35, 1, v38")
    A("v_and_b32 v38, 7, %s" % vDI)
    A("v_lshl_add_u32 v35, v35, 2, v38")
    A("s_lshl_b32 s%d, s%d, 6" % (sT0, sWAVE))
    A("v_lshlrev_b32 v35, 2, v35")
    A("v_add_u32 v35, s%d, v35" % sT0)
    A("ds_write_b32 v35, %s offset:%d" % (Z, L_FP))

    stamp(2)
    A("s_lshl_b32 s%d, s%d, 11" % (sT0, sB))
    A("s_lshl_b32 s%d, s%d, 7" % (sT1, sWAVE))
    A("s_add_u32 s%d, s%d, s%d" % (sT0, sT0, sT1))
    A("v_lshlrev_b32 v3, 2, %s" % vG)
    A("v_add_u32 v3, s%d, v3" % sT0)
    for i in range(8):
        A("ds_read_b32 v%d, v3 offset:%d" % (16 + i, L_XN + 16 * i))
    A("s_waitcnt lgkmcnt(0)")
    for i in range(8):
        A("v_lshrrev_b32 v%d, 16, v%d" % (24 + i, 16 + i))
    qa = [v(8 + i) for i in range(8)]
    for i in range(8):
        for k in range(4):
            c0 = "0" if i == 0 else qa[2 * k]
            c1 = "0" if i == 0 else qa[2 * k + 1]
            A("v_dot2_f32_bf16 %s, v%d, v%d, %s" % (qa[2 * k], WQ + 4 * i + k, 24 + i, c0))
            A("v_dot2_f32_bf16 %s, v%d, v%d, %s" % (qa[2 * k + 1], WQ + 4 * i + k, 16 + i, c1))
    rows_merge8(A, qa)
    A("s_lshl_b32 s%d, s%d, 9" % (sT0, sWAVE))
    A("v_lshlrev_b32 v3, 2, %s" % vDI)
    A("v_add_u32 v3, s%d, v3" % sT0)
    A("v_add_u32 v3, 0x%x, v3" % L_QP)
    A("ds_write2_b32 v3, %s, %s offset0:0 offset1:4" % (qa[0], qa[4]))
    A("s_waitcnt lgkmcnt(0)")
    A("s_barrier")
    stamp(2)
    A("v_and_b32 v38, 7, %s" % vLANE)
    A("v_lshrrev_b32 v39, 3, %s" % vLANE)
    A("v_lshlrev_b32 v3, 9, v39")
    A("v_lshl_add_u32 v3, v38, 2, v3")
    A("s_lshl_b32 s%d, s%d, 5" % (sT0, sWAVE))
    A("v_add_u32 v3, s%d, v3" % sT0)
    A("ds_read_b32 v8, v3 offset:%d" % L_QP)
    A("ds_read_b32 v9, v3 offset:%d" % (L_QP + 4096))
    A("s_waitcnt lgkmcnt(0)")
    A("v_add_f32 v8, v8, v9")
    A("v_add_f32_dpp v8, v8, v8 row_ror:8 %s" % DPPF)
    xrow_allreduce(A, "v_add_f32", "v8", "v9")
    A("v_cvt_pk_bf16_f32 v8, v8, v8")
    A("s_lshl_b32 s%d, s%d, 4" % (sT0, sWAVE))
    A("v_lshlrev_b32 v3, 1, v38")
    A("v_add_u32 v3, s%d, v3" % sT0)
    A("ds_write_b16 v3, v8 offset:%d" % L_QB)
    A("s_waitcnt lgkmcnt(0)")
    A("s_barrier")
    A("v_and_b32 v3, 15, %s" % vLANE)
    A("v_lshlrev_b32 v3, 4, v3")
    A("ds_read_b128 %s, v3 offset:%d" % (vr(Q, 4), L_QB))
    for n in range(E, D):
        issue(n)

    A("s_cmp_lg_u32 s%d, 0" % sWAVE)
    A("s_cbranch_scc1 K1_NOFFN")
    A("s_cmp_lg_u32 s%d, 1" % sJV)
    A("s_cbranch_scc1 K1_NOFFN")
    A("s_lshl_b32 s%d, s%d, 13" % (sT0, sJ))
    A("v_lshlrev_b32 v3, 4, %s" % vLANE)
    A("v_add_u32 v3, s%d, v3" % sT0)
    for f in range(8):
        A("s_mov_b32 s%d, 0x%x" % (sOFF, (f >> 2) * 4096))
        A("buffer_load_dwordx4 %s, v3, %s, s%d offen offset:%d%s" % (vr(WQ + 4 * f, 4), sr(sWD, 4), sOFF, (f & 3) * 1024, WNT))
    A("v_lshlrev_b32 v38, 2, %s" % vLANE)
    A("ds_read_b32 v8, v38 offset:%d" % (L_FP))
    A("ds_read_b32 v9, v38 offset:%d" % (L_FP + 256))
    A("ds_read_b32 v10, v38 offset:%d" % (L_FP + 512))
    A("ds_read_b32 v11, v38 offset:%d" % (L_FP + 768))
    A("s_waitcnt lgkmcnt(0)")
    A("v_add_f32 v8, v8, v9")
    A("v_add_f32 v10, v10, v11")
    xrow_allreduce(A, "v_add_f32", "v8", "v9")
    xrow_allreduce(A, "v_add_f32", "v10", "v11")
    rne2(A, "v8", "v10", "v9")
    A("v_mul_f32 v9, v8, v8")
    A("v_mov_b32 v11, 0x3f4c422a")
    A("v_fmac_f32 v11, 0x3d12220c, v9")
    A("v_mul_f32 v11, v11, v8")
    A("v_mul_f32 v11, 0xc038aa3b, v11")
    A("v_exp_f32 v11, v11")
    A("v_add_f32 v11, 1.0, v11")
    A("v_rcp_f32 v11, v11")
    A("v_mul_f32 v8, v8, v11")
    rne1(A, "v8", "v9")
    A("v_mul_f32 v8, v8, v10")
    rne1(A, "v8", "v9")
    for i in range(16):
        A("v_readlane_b32 s%d, v8, %d" % (sHH + i, i))
    for i in range(16):
        A("s_lshr_b32 s%d, s%d, 16" % (sHL + i, sHH + i))
    A("s_waitcnt vmcnt(0)")
    YA = [v(8 + i) for i in range(16)]
    for f in range(8):
        for k in range(4):
            for b in range(2):
                c0 = "0" if f == 0 else YA[b * 8 + 2 * k]
                c1 = "0" if f == 0 else YA[b * 8 + 2 * k + 1]
                A("v_dot2_f32_bf16 %s, v%d, s%d, %s" % (YA[b * 8 + 2 * k], WQ + 4 * f + k, sHL + b * 8 + f, c0))
                A("v_dot2_f32_bf16 %s, v%d, s%d, %s" % (YA[b * 8 + 2 * k + 1], WQ + 4 * f + k, sHH + b * 8 + f, c1))
    A("s_lshl_b32 s%d, s%d, 12" % (sT0, sJ))
    A("s_add_u32 s%d, s%d, 0x%x" % (sT0, sT0, WS_Y))
    A("v_lshlrev_b32 v3, 5, %s" % vLANE)
    A("v_add_u32 v3, s%d, v3" % sT0)
    A("buffer_store_dwordx4 v[8:11], v3, %s, 0 offen" % sr(sWS, 4))
    A("buffer_store_dwordx4 v[12:15], v3, %s, 0 offen offset:16" % sr(sWS, 4))
    A("buffer_store_dwordx4 v[16:19], v3, %s, 0 offen offset:2048" % sr(sWS, 4))
    A("buffer_store_dwordx4 v[20:23], v3, %s, 0 offen offset:2064" % sr(sWS, 4))
    A.label("K1_NOFFN")
    if EWO:
        for m in range(64, 72):
            issue(m)
    A("s_waitcnt lgkmcnt(0)")
    stamp()

    def waitfor(n):
        if CFG["PRIO"] == 1 and n % 16 == 0:
            A("s_setprio %d" % (3 - n // 16))
        if CFG["PRIO"] == 2 and n in (0, 40, 52, 60):
            A("s_setprio %d" % {0: 3, 40: 2, 52: 1, 60: 0}[n])
        if CFG["PRIO"] == 3 and n in (0, 8, 16, 24):
            A("s_setprio %d" % {0: 3, 8: 2, 16: 1, 24: 0}[n])
        outstanding_after = min(n + D - 1, NTOT - 1) - n
        if EWO and n < D:
            outstanding_after += 8
        A("s_waitcnt vmcnt(%d)" % outstanding_after)

    a = [v(AA + i) for i in range(4)]
    for I in range(8):
        for t in range(4):
            n = 4 * I + t
            if LB and n % LB == 0 and n > 0:
                A("s_barrier")
            waitfor(n)
            base = RING + 4 * (n % D)
            for k in range(4 if not CFG["NOCOMP"] else 1):
                c = "0" if k == 0 else a[t]
                A("v_dot2_f32_bf16 %s, v%d, v%d, %s" % (a[t], base + k, Q + k, c))
            if n + D < NTOT:
                issue(n + D)
        for t in range(4):
            A("v_add_f32_dpp %s, %s, %s quad_perm:[1,0,3,2] %s" % (a[t], a[t], a[t], DPPF))
        for t in range(4):
            A("v_add_f32_dpp %s, %s, %s quad_perm:[2,3,0,1] %s" % (a[t], a[t], a[t], DPPF))
        A("v_add_f32_dpp %s, %s, %s row_half_mirror row_mask:0xf bank_mask:0x5" % (vC, a[0], a[0]))
        A("v_add_f32_dpp %s, %s, %s row_half_mirror row_mask:0xf bank_mask:0xa" % (vC, a[1], a[1]))
        A("v_add_f32_dpp %s, %s, %s row_half_mirror row_mask:0xf bank_mask:0x5" % (vD, a[2], a[2]))
        A("v_add_f32_dpp %s, %s, %s row_half_mirror row_mask:0xf bank_mask:0xa" % (vD, a[3], a[3]))
        A("v_add_f32_dpp v%d, %s, %s row_ror:8 row_mask:0xf bank_mask:0x3" % (PL + I, vC, vC))
        A("v_add_f32_dpp v%d, %s, %s row_ror:8 row_mask:0xf bank_mask:0xc" % (PL + I, vD, vD))

    stamp()
    M = [v(PL + i) for i in range(8)]
    T = "v38"
    for i in range(0, 8, 2):
        rne2(A, M[i], M[i + 1], T)
        A("v_mul_f32 %s, %s, %s" % (M[i], SCALE, M[i]))
        A("v_mul_f32 %s, %s, %s" % (M[i + 1], SCALE, M[i + 1]))
        rne2(A, M[i], M[i + 1], T)
    vM, vL = "v40", "v41"
    A("v_max3_f32 %s, %s, %s, %s" % (vM, M[0], M[1], M[2]))
    A("v_max3_f32 %s, %s, %s, %s" % (vM, vM, M[3], M[4]))
    A("v_max3_f32 %s, %s, %s, %s" % (vM, vM, M[5], M[6]))
    A("v_max_f32 %s, %s, %s" % (vM, vM, M[7]))
    A("v_max_f32_dpp %s, %s, %s row_ror:4 %s" % (vM, vM, vM, DPPF))
    A("v_max_f32_dpp %s, %s, %s row_ror:8 %s" % (vM, vM, vM, DPPF))
    xrow_allreduce(A, "v_max_f32", vM, T)
    A("v_mul_f32 v39, %s, %s" % (LOG2E, vM))
    A("s_mov_b32 s%d, %s" % (sT0, LOG2E))
    for i in range(8):
        A("v_fma_f32 %s, %s, s%d, -v39" % (M[i], M[i], sT0))
    for i in range(8):
        A("v_exp_f32 %s, %s" % (M[i], M[i]))
    A("v_add_f32 %s, %s, %s" % (vL, M[0], M[1]))
    A("v_add_f32 %s, %s, %s" % (T, M[2], M[3]))
    A("v_add_f32 v39, %s, %s" % (M[4], M[5]))
    A("v_add_f32 v42, %s, %s" % (M[6], M[7]))
    A("v_add_f32 %s, %s, %s" % (vL, vL, T))
    A("v_add_f32 v39, v39, v42")
    A("v_add_f32 %s, %s, v39" % (vL, vL))
    A("v_add_f32_dpp %s, %s, %s row_ror:4 %s" % (vL, vL, vL, DPPF))
    A("v_add_f32_dpp %s, %s, %s row_ror:8 %s" % (vL, vL, vL, DPPF))
    xrow_allreduce(A, "v_add_f32", vL, T)
    for i in range(0, 8, 2):
        A("v_cvt_pk_bf16_f32 %s, %s, %s" % (T, M[i], M[i + 1]))
        A("v_lshlrev_b32 v%d, 16, %s" % (PH + i, T))
        A("v_and_b32 v%d, %s, %s" % (PH + i + 1, HI, T))
        A("v_and_b32 v%d, 0xffff, %s" % (PL + i, T))
        A("v_lshrrev_b32 v%d, 16, %s" % (PL + i + 1, T))
    acc = [v(ACC + i) for i in range(8)]
    for i in range(8):
        A("v_mov_b32 %s, 0" % acc[i])

    for i in range(32):
        n = 32 + i
        I, qd = i >> 2, i & 3
        if LB and n % LB == 0:
            A("s_barrier")
        waitfor(n)
        base = RING + 4 * (n % D)
        for k in range(4 if not CFG["NOCOMP"] else 0):
            A("v_dot2c_f32_bf16_dpp %s, v%d, v%d row_newbcast:%d %s" % (acc[2 * k], PL + I, base + k, 4 * qd, DPPF))
            A("v_dot2c_f32_bf16_dpp %s, v%d, v%d row_newbcast:%d %s" % (acc[2 * k + 1], PH + I, base + k, 4 * qd, DPPF))
        if n + D < NTOT:
            issue(n + D)

    for m in range(64 + D, NTOT):
        issue(m)
    stamp()
    rows_merge8(A, acc)
    A("s_lshl_b32 s%d, s%d, 9" % (sT0, sWAVE))
    A("v_lshlrev_b32 v3, 2, %s" % vDI)
    A("v_add_u32 v3, s%d, v3" % sT0)
    A("v_add_u32 v3, 0x%x, v3" % L_OP)
    A("ds_write2_b32 v3, %s, %s offset0:0 offset1:4" % (acc[0], acc[4]))
    A("s_lshl_b32 s%d, s%d, 3" % (sT0, sWAVE))
    A("v_mov_b32 v3, s%d" % sT0)
    A("ds_write_b64 v3, v[40:41] offset:%d" % L_ML)
    A("s_waitcnt lgkmcnt(0)")
    A("s_barrier")
    A("v_and_b32 v38, 7, %s" % vLANE)
    A("v_lshrrev_b32 v39, 3, %s" % vLANE)
    A("v_lshlrev_b32 v3, 3, v39")
    A("ds_read_b64 v[16:17], v3 offset:%d" % L_ML)
    A("ds_read_b64 v[18:19], v3 offset:%d" % (L_ML + 64))
    A("v_lshlrev_b32 v3, 9, v39")
    A("v_lshl_add_u32 v3, v38, 2, v3")
    A("s_lshl_b32 s%d, s%d, 5" % (sT0, sWAVE))
    A("v_add_u32 v3, s%d, v3" % sT0)
    A("ds_read_b32 v20, v3 offset:%d" % L_OP)
    A("ds_read_b32 v21, v3 offset:%d" % (L_OP + 4096))
    A("s_waitcnt lgkmcnt(0)")
    A("v_max_f32 v22, v16, v18")
    A("v_max_f32_dpp v22, v22, v22 row_ror:8 %s" % DPPF)
    xrow_allreduce(A, "v_max_f32", "v22", "v23")
    A("v_sub_f32 v16, v16, v22")
    A("v_sub_f32 v18, v18, v22")
    A("v_mul_f32 v16, %s, v16" % LOG2E)
    A("v_mul_f32 v18, %s, v18" % LOG2E)
    A("v_exp_f32 v16, v16")
    A("v_exp_f32 v18, v18")
    A("v_mul_f32 v24, v16, v20")
    A("v_mul_f32 v23, v16, v17")
    A("v_fmac_f32 v24, v18, v21")
    A("v_fmac_f32 v23, v18, v19")
    A("v_add_f32_dpp v24, v24, v24 row_ror:8 %s" % DPPF)
    A("v_add_f32_dpp v23, v23, v23 row_ror:8 %s" % DPPF)
    xrow_allreduce(A, "v_add_f32", "v24", "v25")
    xrow_allreduce(A, "v_add_f32", "v23", "v25")
    A("s_cmp_lg_u32 s%d, 0" % sWAVE)
    A("s_cbranch_scc1 K1_NOML")
    A("s_lshl_b32 s%d, s2, 3" % sT0)
    A("s_add_u32 s%d, s%d, 0x%x" % (sT0, sT0, WS_ML))
    A("v_mov_b32 v3, s%d" % sT0)
    A("buffer_store_dwordx2 v[22:23], v3, %s, 0 offen" % sr(sWS, 4))
    A.label("K1_NOML")
    A("s_waitcnt vmcnt(0)")
    for r in range(8):
        for k in range(4):
            A("v_lshlrev_b32 v26, 16, v%d" % (WQ + 4 * r + k))
            A("v_and_b32 v27, %s, v%d" % (HI, WQ + 4 * r + k))
            op = "v_mul_f32_dpp" if r == 0 else "v_fmac_f32_dpp"
            A("%s %s, v24, v26 row_newbcast:%d %s" % (op, acc[2 * k], r, DPPF))
            A("%s %s, v24, v27 row_newbcast:%d %s" % (op, acc[2 * k + 1], r, DPPF))
    A("s_lshl_b32 s%d, s%d, 11" % (sT0, sWAVE))
    A("v_lshlrev_b32 v3, 5, %s" % vLANE)
    A("v_add_u32 v3, s%d, v3" % sT0)
    A("ds_write_b128 v3, v[8:11] offset:%d" % L_TP)
    A("ds_write_b128 v3, v[12:15] offset:%d" % (L_TP + 16))
    A("s_waitcnt lgkmcnt(0)")
    A("s_barrier")
    if STAMP:
        stamp()
        A("s_waitcnt lgkmcnt(0)")
        A("s_lshl_b32 s%d, s2, 4" % sT0)
        A("s_add_u32 s%d, s%d, s%d" % (sT0, sT0, sWAVE))
        A("s_lshl_b32 s%d, s%d, 5" % (sT0, sT0))
        A("s_add_u32 s%d, s%d, 0x1c0000" % (sT0, sT0))
        A("v_mov_b32 v3, s%d" % sT0)
        for i in range(5):
            A("v_mov_b32 v%d, s%d" % (16 + i, 4 + 2 * i))
        A("buffer_store_dwordx4 v[16:19], v3, %s, 0 offen" % sr(sWS, 4))
        A("buffer_store_dword v20, v3, %s, 0 offen offset:16" % sr(sWS, 4))
    A("s_cmp_ge_u32 s%d, 8" % sWAVE)
    A("s_cbranch_scc1 K1_END")
    A("v_lshlrev_b32 v3, 2, %s" % vTID)
    for i in range(16):
        A("ds_read_b32 v%d, v3 offset:%d" % (16 + i, L_TP + 2048 * i))
    A("s_waitcnt lgkmcnt(0)")
    for i in range(8):
        A("v_add_f32 v%d, v%d, v%d" % (16 + i, 16 + i, 24 + i))
    for i in range(4):
        A("v_add_f32 v%d, v%d, v%d" % (16 + i, 16 + i, 20 + i))
    A("v_add_f32 v16, v16, v18")
    A("v_add_f32 v17, v17, v19")
    A("v_add_f32 v16, v16, v17")
    A("s_lshl_b32 s%d, s2, 11" % sT0)
    A("v_add_u32 v3, s%d, v3" % sT0)
    A("buffer_store_dword v16, v3, %s, 0 offen" % sr(sWS, 4))
    A.label("K1_END")
    A("s_endpgm")
    return A.text()


def gen_k2():
    A = Asm()
    sT, sY, sX, sO = 28, 32, 36, 40
    sB, sCS, sT0, sT1 = 44, 45, 46, 47
    A("s_cmp_ge_u32 s2, 64")
    A("s_cbranch_scc1 K2_END")
    A("s_load_dwordx2 s[4:5], s[0:1], 0")
    A("s_load_dwordx2 s[6:7], s[0:1], 72")
    A("s_load_dwordx2 s[8:9], s[0:1], 88")
    A("s_lshr_b32 s%d, s2, 5" % sB)
    A("s_and_b32 s%d, s2, 31" % sCS)
    A("v_and_b32 v1, 3, v0")
    A("v_lshrrev_b32 v2, 2, v0")
    A("s_waitcnt lgkmcnt(0)")
    srd(A, sT, 8, WS_Y)
    srd(A, sY, 8, WS_Y + NFFN * 4096)
    srd(A, sX, 4, 2048)
    srd(A, sO, 6, 2048)
    A("s_lshl_b32 s%d, s%d, 18" % (sT0, sB))
    A("s_lshl_b32 s%d, s%d, 6" % (sT1, sCS))
    A("s_add_u32 s%d, s%d, s%d" % (sT0, sT0, sT1))
    A("v_lshlrev_b32 v3, 11, v2")
    A("v_lshl_add_u32 v3, v1, 4, v3")
    A("v_add_u32 v4, s%d, v3" % sT0)
    A("s_mov_b32 s48, 0x20000")
    A("buffer_load_dwordx4 v[8:11], v4, %s, 0 offen" % sr(sT, 4))
    A("buffer_load_dwordx4 v[12:15], v4, %s, s48 offen" % sr(sT, 4))
    A("v_and_b32 v5, 31, v2")
    A("v_lshlrev_b32 v5, 3, v5")
    A("s_lshl_b32 s%d, s%d, 10" % (sT0, sB))
    A("s_add_u32 s%d, s%d, 0x%x" % (sT0, sT0, WS_ML))
    A("v_add_u32 v5, s%d, v5" % sT0)
    for c in range(4):
        A("buffer_load_dwordx2 v[%d:%d], v5, %s, 0 offen offset:%d" % (16 + 2 * c, 17 + 2 * c, sr(sT, 4), 256 * c))
    A("s_lshl_b32 s%d, s%d, 11" % (sT0, sB))
    A("s_add_u32 s%d, s%d, s%d" % (sT0, sT0, sT1))
    A("s_add_u32 s%d, s%d, 0x%x" % (sT0, sT0, WS_Y))
    A("v_lshlrev_b32 v3, 12, v2")
    A("v_lshl_add_u32 v3, v1, 4, v3")
    A("v_add_u32 v4, s%d, v3" % sT0)
    for i in range(3):
        A("s_mov_b32 s48, 0x%x" % (i * 64 * 4096))
        A("buffer_load_dwordx4 v[%d:%d], v4, %s, s48 offen" % (24 + 4 * i, 27 + 4 * i, sr(sY, 4)))
    A("s_lshl_b32 s%d, s%d, 10" % (sT0, sB))
    A("s_lshl_b32 s%d, s%d, 5" % (sT1, sCS))
    A("s_add_u32 s%d, s%d, s%d" % (sT0, sT0, sT1))
    A("v_and_b32 v6, 15, v0")
    A("v_lshlrev_b32 v6, 1, v6")
    A("v_add_u32 v6, s%d, v6" % sT0)
    A("buffer_load_ushort v7, v6, %s, 0 offen" % sr(sX, 4))
    A("s_waitcnt vmcnt(4)")
    A("v_max3_f32 v36, v16, v18, v20")
    A("v_max_f32 v36, v36, v22")
    for c in range(4):
        A("v_sub_f32 v%d, v%d, v36" % (16 + 2 * c, 16 + 2 * c))
    for c in range(4):
        A("v_mul_f32 v%d, %s, v%d" % (16 + 2 * c, LOG2E, 16 + 2 * c))
    for c in range(4):
        A("v_exp_f32 v%d, v%d" % (16 + 2 * c, 16 + 2 * c))
    A("v_mul_f32 v36, v16, v17")
    A("v_fmac_f32 v36, v18, v19")
    A("v_fmac_f32 v36, v20, v21")
    A("v_fmac_f32 v36, v22, v23")
    A("v_rcp_f32 v37, v36")
    A("v_fma_f32 v38, -v36, v37, 1.0")
    A("v_fmac_f32 v37, v38, v37")
    A("v_cmp_gt_u32 vcc, 32, v2")
    A("v_cndmask_b32 v38, v18, v16, vcc")
    A("v_cndmask_b32 v39, v22, v20, vcc")
    A("v_mul_f32 v38, v38, v37")
    A("v_mul_f32 v39, v39, v37")
    for k in range(4):
        A("v_mul_f32 v%d, v38, v%d" % (8 + k, 8 + k))
    for k in range(4):
        A("v_fmac_f32 v%d, v39, v%d" % (8 + k, 12 + k))
    A("s_waitcnt vmcnt(1)")
    for k in range(4):
        A("v_add_f32 v%d, v%d, v%d" % (12 + k, 24 + k, 28 + k))
    for k in range(4):
        A("v_add_f32 v%d, v%d, v%d" % (12 + k, 12 + k, 32 + k))
    for k in range(8):
        A("v_add_f32_dpp v%d, v%d, v%d row_ror:4 %s" % (8 + k, 8 + k, 8 + k, DPPF))
    for k in range(8):
        A("v_add_f32_dpp v%d, v%d, v%d row_ror:8 %s" % (8 + k, 8 + k, 8 + k, DPPF))
    rows_merge8(A, [v(8 + i) for i in range(8)])
    A("v_and_b32 v16, 63, v0")
    A("v_lshrrev_b32 v17, 4, v16")
    A("v_and_b32 v18, 1, v17")
    A("v_lshlrev_b32 v18, 1, v18")
    A("v_lshrrev_b32 v17, 1, v17")
    A("v_or_b32 v18, v18, v17")
    A("v_lshl_add_u32 v18, v1, 2, v18")
    A("v_lshrrev_b32 v17, 6, v0")
    A("v_lshl_add_u32 v18, v17, 5, v18")
    A("v_lshlrev_b32 v18, 2, v18")
    A("ds_write_b32 v18, v8")
    A("ds_write_b32 v18, v12 offset:64")
    A("s_waitcnt lgkmcnt(0)")
    A("s_barrier")
    A("v_cmp_gt_u32 vcc, 16, v0")
    A("s_and_saveexec_b64 s[50:51], vcc")
    A("s_cbranch_execz K2_END")
    A("v_lshlrev_b32 v18, 2, v0")
    for w in range(4):
        A("ds_read_b32 v%d, v18 offset:%d" % (20 + w, 128 * w))
        A("ds_read_b32 v%d, v18 offset:%d" % (24 + w, 128 * w + 64))
    A("s_waitcnt lgkmcnt(0)")
    A("v_add_f32 v20, v20, v21")
    A("v_add_f32 v22, v22, v23")
    A("v_add_f32 v24, v24, v25")
    A("v_add_f32 v26, v26, v27")
    A("v_add_f32 v20, v20, v22")
    A("v_add_f32 v24, v24, v26")
    rne2(A, "v20", "v24", "v21")
    A("v_mul_f32 v25, 0xbfb8aa3b, v24")
    A("v_exp_f32 v25, v25")
    A("v_add_f32 v25, 1.0, v25")
    A("v_rcp_f32 v26, v25")
    A("v_mul_f32 v27, v24, v26")
    A("v_fma_f32 v28, -v27, v25, v24")
    A("v_fmac_f32 v27, v28, v26")
    rne1(A, "v27", "v21")
    A("v_mul_f32 v20, v20, v27")
    rne1(A, "v20", "v21")
    A("s_waitcnt vmcnt(0)")
    A("v_lshlrev_b32 v7, 16, v7")
    A("v_add_f32 v20, v20, v7")
    A("v_cvt_pk_bf16_f32 v20, v20, v20")
    A("buffer_store_short v20, v6, %s, 0 offen" % sr(sO, 4))
    A.label("K2_END")
    A("s_endpgm")
    return A.text()


def kd(name, vg, sg):
    return """.amdhsa_kernel %s
  .amdhsa_next_free_vgpr %d
  .amdhsa_next_free_sgpr %d
  .amdhsa_accum_offset %d
  .amdhsa_group_segment_fixed_size 0
  .amdhsa_kernarg_size 96
  .amdhsa_user_sgpr_count 2
  .amdhsa_user_sgpr_kernarg_segment_ptr 1
  .amdhsa_system_sgpr_workgroup_id_x 1
.end_amdhsa_kernel
""" % (name, vg, sg, (vg + 3) // 4 * 4)


def main():
    out = sys.argv[1]
    k1 = NAME + "_kernel"
    k2 = "combine_kernel"
    hdr = open("cdna_kernels/%s.s.ref" % NAME).read().split("; Override launch")[0]
    s = hdr
    s += "; @launch kernel=%s grid=(256,1,1) block=(1024,1,1) lds=%d\n" % (k1, L_TOTAL)
    s += "; @launch kernel=%s grid=(64,1,1) block=(256,1,1) lds=512\n" % k2
    s += '.amdgcn_target "amdgcn-amd-amdhsa--gfx950"\n.text\n'
    for nm, body in ((k1, gen_k1()), (k2, gen_k2())):
        s += ".globl %s\n.p2align 8\n.type %s,@function\n%s:\n" % (nm, nm, nm)
        s += body
    s += '.section .rodata,"a"\n.p2align 6\n'
    s += kd(k1, 128, 102)
    s += ".p2align 6\n"
    s += kd(k2, 40, 56)
    open(out, "w").write(s)


main()
```

```python
import sys
import os
sys.path.insert(0, os.path.dirname(os.path.abspath(__file__)))
from asmlib import Asm

NAME = "recurrent_scan__gqa_block_cached__geglu_ffn__decode"

CFG = dict(D=12, NT=1, INTERLEAVE=False, STAMP=0, PB=0, LB=0, NOFFN=0, NOWQ=0, NOWO=0, CPF=0, E=12, ROT=1, NOCOMP=0, EWO=1, PRIO=0, WNT=0, RA=1, RB=3, KNT=1, VNT=1, TW=0)
for a in sys.argv[2:]:
    k, v = a.split("=")
    CFG[k] = int(v)
D = CFG["D"]
NT = ["", " nt", " sc1 nt", " sc0 sc1 nt", " sc0 sc1", " sc1", " sc0 nt"][CFG["NT"]]
INTERLEAVE = CFG["INTERLEAVE"]
WNT = " nt" if CFG["WNT"] else ""
STAMP = CFG["STAMP"]
PB = CFG["PB"]
LB = CFG["LB"]

LOG2E = "0x3fb8aa3b"
SCALE = "0x3db504f3"
HI = "0xffff0000"

WS_T = 0
WS_ML = 512 * 1024
WS_Y = 1024 * 1024
NFFN = 172

L_XN = 0
L_QP = 4096
L_QB = 12288
L_FP = 12544
L_ML = 13568
L_OP = 13824
L_TP = 22528
L_TOTAL = 55296


def v(n):
    return "v%d" % n


def vr(n, c):
    return "v[%d:%d]" % (n, n + c - 1)


def sr(n, c):
    return "s[%d:%d]" % (n, n + c - 1)


def srd(A, dst, ptr, nbytes):
    A("s_mov_b32 s%d, s%d" % (dst, ptr))
    A("s_and_b32 s%d, s%d, 0xffff" % (dst + 1, ptr + 1))
    if isinstance(nbytes, str):
        A("s_mov_b32 s%d, %s" % (dst + 2, nbytes))
    else:
        A("s_mov_b32 s%d, 0x%x" % (dst + 2, nbytes))
    A("s_mov_b32 s%d, 0x00020000" % (dst + 3))


DPPF = "row_mask:0xf bank_mask:0xf"


def row_allreduce(A, op, x):
    A("%s_dpp %s, %s, %s quad_perm:[1,0,3,2] %s" % (op, x, x, x, DPPF))
    A("%s_dpp %s, %s, %s quad_perm:[2,3,0,1] %s" % (op, x, x, x, DPPF))
    A("%s_dpp %s, %s, %s row_half_mirror %s" % (op, x, x, x, DPPF))
    A("%s_dpp %s, %s, %s row_mirror %s" % (op, x, x, x, DPPF))


def xrow_allreduce(A, op, x, t):
    A("v_mov_b32 %s, %s" % (t, x))
    A("v_permlane16_swap_b32 %s, %s" % (x, t))
    A("%s %s, %s, %s" % (op, x, x, t))
    A("v_mov_b32 %s, %s" % (t, x))
    A("v_permlane32_swap_b32 %s, %s" % (x, t))
    A("%s %s, %s, %s" % (op, x, x, t))


def rows_merge8(A, a):
    for i in range(0, 8, 2):
        A("v_permlane32_swap_b32 %s, %s" % (a[i], a[i + 1]))
    for i in range(0, 8, 2):
        A("v_add_f32 %s, %s, %s" % (a[i], a[i], a[i + 1]))
    A("v_permlane16_swap_b32 %s, %s" % (a[0], a[2]))
    A("v_permlane16_swap_b32 %s, %s" % (a[4], a[6]))
    A("v_add_f32 %s, %s, %s" % (a[0], a[0], a[2]))
    A("v_add_f32 %s, %s, %s" % (a[4], a[4], a[6]))


def rne2(A, a, b, t):
    A("v_cvt_pk_bf16_f32 %s, %s, %s" % (t, a, b))
    A("v_lshlrev_b32 %s, 16, %s" % (a, t))
    A("v_and_b32 %s, %s, %s" % (b, HI, t))


def rne1(A, a, t):
    A("v_cvt_pk_bf16_f32 %s, %s, %s" % (t, a, a))
    A("v_lshlrev_b32 %s, 16, %s" % (a, t))


def layernorm(A, X, vaddr, off):
    f = [v(32 + i) for i in range(8)]
    S, T, MEAN, R = "v40", "v41", "v42", "v43"
    for k in range(4):
        A("v_lshlrev_b32 %s, 16, v%d" % (f[2 * k], X + k))
        A("v_and_b32 %s, %s, v%d" % (f[2 * k + 1], HI, X + k))
    A("v_add_f32 %s, %s, %s" % (S, f[0], f[1]))
    A("v_add_f32 %s, %s, %s" % (T, f[2], f[3]))
    A("v_add_f32 %s, %s, %s" % (R, f[4], f[5]))
    A("v_add_f32 %s, %s, %s" % (MEAN, f[6], f[7]))
    A("v_add_f32 %s, %s, %s" % (S, S, T))
    A("v_add_f32 %s, %s, %s" % (R, R, MEAN))
    A("v_add_f32 %s, %s, %s" % (S, S, R))
    row_allreduce(A, "v_add_f32", S)
    xrow_allreduce(A, "v_add_f32", S, T)
    A("v_mul_f32 %s, 0x3b000000, %s" % (MEAN, S))
    for k in range(8):
        A("v_sub_f32 %s, %s, %s" % (R, f[k], MEAN))
        if k == 0:
            A("v_mul_f32 %s, %s, %s" % (S, R, R))
        else:
            A("v_fmac_f32 %s, %s, %s" % (S, R, R))
    row_allreduce(A, "v_add_f32", S)
    xrow_allreduce(A, "v_add_f32", S, T)
    A("v_mul_f32 %s, 0x3b000000, %s" % (S, S))
    rne2(A, MEAN, S, T)
    A("v_add_f32 %s, 0x3727c5ac, %s" % (S, S))
    rne1(A, S, T)
    A("v_sqrt_f32 %s, %s" % (S, S))
    rne1(A, S, T)
    A("v_rcp_f32 %s, %s" % (R, S))
    Q0, Q1 = "v44", "v45"
    for k in range(0, 8, 2):
        A("v_sub_f32 %s, %s, %s" % (f[k], f[k], MEAN))
        A("v_sub_f32 %s, %s, %s" % (f[k + 1], f[k + 1], MEAN))
        rne2(A, f[k], f[k + 1], T)
        A("v_mul_f32 %s, %s, %s" % (Q0, f[k], R))
        A("v_mul_f32 %s, %s, %s" % (Q1, f[k + 1], R))
        A("v_fma_f32 %s, -%s, %s, %s" % (f[k], Q0, S, f[k]))
        A("v_fma_f32 %s, -%s, %s, %s" % (f[k + 1], Q1, S, f[k + 1]))
        A("v_fma_f32 %s, %s, %s, %s" % (f[k], f[k], R, Q0))
        A("v_fma_f32 %s, %s, %s, %s" % (f[k + 1], f[k + 1], R, Q1))
        rne2(A, f[k], f[k + 1], T)
    A("ds_write_b128 %s, v[32:35] offset:%d" % (vaddr, off))
    A("ds_write_b128 %s, v[36:39] offset:%d" % (vaddr, off + 16))


def gen_k1():
    A = Asm()
    sK, sV, sWQ, sWO, sX, sF, sWD, sWS = 28, 32, 36, 40, 44, 48, 52, 56
    sWAVE, sH, sB, sC, sJ, sJV, sT0, sT1 = 60, 61, 62, 63, 64, 65, 66, 67
    sHH, sHL = 68, 84
    sOFF = 100
    sROT = 101
    vTID, vLANE, vKV, vA = "v0", "v1", "v2", "v3"
    Q = 4
    ACC = 8
    PL, PH = 16, 24
    AA = 32
    vC, vD = "v36", "v37"
    vDI = "v46"
    vG = "v47"
    WQ = 48
    RING = 80
    assert RING + 4 * D <= 128

    A("s_cmp_ge_u32 s2, 256")
    A("s_cbranch_scc1 K1_END")
    A("s_load_dwordx16 s[4:19], s[0:1], 0")
    A("s_load_dwordx8 s[20:27], s[0:1], 64")
    if CFG["CPF"]:
        A("s_getpc_b64 s[28:29]")
        A("v_lshlrev_b32 v1, 4, v0")
        A("global_load_dwordx4 v[124:127], v1, s[28:29]")
    A("v_and_b32 %s, 63, %s" % (vLANE, vTID))
    A("v_lshrrev_b32 v3, 6, %s" % vTID)
    A("v_readfirstlane_b32 s%d, v3" % sWAVE)
    A("s_and_b32 s%d, s2, 31" % sH)
    A("s_lshr_b32 s%d, s2, 7" % sB)
    A("s_bfe_u32 s%d, s2, 0x20005" % sC)
    A("s_and_b32 s%d, s2, 0xc0" % sJ)
    A("s_and_b32 s%d, s2, 7" % sT0)
    A("s_lshl_b32 s%d, s%d, 3" % (sT0, sT0))
    A("s_add_u32 s%d, s%d, s%d" % (sJ, sJ, sT0))
    A("s_bfe_u32 s%d, s2, 0x30003" % sT0)
    A("s_add_u32 s%d, s%d, s%d" % (sJ, sJ, sT0))
    A("s_cmp_lt_u32 s%d, %d" % (sJ, NFFN))
    A("s_cselect_b32 s%d, %d, 0" % (sJV, 0 if CFG["NOFFN"] else 1))
    A("v_lshrrev_b32 %s, 4, %s" % (vG, vLANE))
    A("v_and_b32 v38, 1, %s" % vG)
    A("v_lshlrev_b32 v38, 1, v38")
    A("v_lshrrev_b32 v39, 1, %s" % vG)
    A("v_or_b32 v38, v38, v39")
    A("v_and_b32 v39, 15, %s" % vLANE)
    A("v_lshl_add_u32 %s, v39, 3, v38" % vDI)
    A("s_waitcnt lgkmcnt(0)")
    srd(A, sX, 4, 2048)
    srd(A, sK, 6, 0x8000000)
    srd(A, sV, 8, 0x8000000)
    srd(A, sWQ, 10, 0 if CFG["NOWQ"] else 0x400000)
    srd(A, sWO, 12, 0 if CFG["NOWO"] else 0x400000)
    srd(A, sWD, 20, 1376 * 1024)
    srd(A, sWS, 26, 0x200000)
    A("s_cmp_lt_u32 s%d, 8" % sWAVE)
    A("s_cselect_b32 s%d, s16, s18" % sF)
    A("s_cselect_b32 s%d, s17, s19" % (sF + 1))
    A("s_and_b32 s%d, s%d, 0xffff" % (sF + 1, sF + 1))
    A("s_cmp_eq_u32 s%d, 1" % sJV)
    A("s_cselect_b32 s%d, 0x%x, 0" % (sF + 2, 512 * 2752))
    A("s_mov_b32 s%d, 0x00020000" % (sF + 3))

    nst = [0]
    def stamp(level=1):
        if (STAMP == 1 and level == 1) or (STAMP == 2 and level in (0, 2)) or (STAMP and level == 0) or (STAMP == 3 and level == 3):
            A("s_memrealtime s[%d:%d]" % (4 + 2 * nst[0], 5 + 2 * nst[0]))
            nst[0] += 1
    stamp(0)
    A("v_lshlrev_b32 %s, 4, %s" % (vA, vLANE))
    A("buffer_load_dwordx4 v[8:11], %s, %s, 0 offen" % (vA, sr(sX, 4)))
    A("buffer_load_dwordx4 v[12:15], %s, %s, 0 offen offset:1024" % (vA, sr(sX, 4)))
    if STAMP == 3:
        A("s_waitcnt vmcnt(0)")
        stamp(3)
    A("s_lshl_b32 s%d, s%d, 18" % (sT0, sWAVE))
    A("s_lshl_b32 s%d, s%d, 8" % (sT1, sH))
    A("s_add_u32 s%d, s%d, s%d" % (sT0, sT0, sT1))
    A("v_lshlrev_b32 v38, 13, %s" % vG)
    A("v_lshl_add_u32 v38, v39, 4, v38")
    A("v_add_u32 v38, s%d, v38" % sT0)
    for i in range(8):
        A("s_mov_b32 s%d, 0x%x" % (sOFF, i * 32768))
        A("buffer_load_dwordx4 %s, v38, %s, s%d offen%s" % (vr(WQ + 4 * i, 4), sr(sWQ, 4), sOFF, WNT))
    if STAMP == 3:
        A("s_waitcnt vmcnt(0)")
        stamp(3)
    A("s_and_b32 s%d, s%d, 7" % (sT0, sWAVE))
    A("s_lshl_b32 s%d, s%d, 6" % (sT0, sT0))
    A("v_add_u32 v38, s%d, %s" % (sT0, vLANE))
    A("s_movk_i32 s%d, 2752" % sT1)
    A("v_mul_lo_u32 v38, v38, s%d" % sT1)
    A("s_lshl_b32 s%d, s%d, 4" % (sT1, sJ))
    A("v_add_u32 v38, s%d, v38" % sT1)
    A("buffer_load_dwordx4 v[28:31], v38, %s, 0 offen%s" % (sr(sF, 4), WNT))
    if STAMP == 3:
        A("s_waitcnt vmcnt(0)")
        stamp(3)
    A("s_lshl_b32 s%d, s%d, 5" % (sT0, sB))
    A("s_add_u32 s%d, s%d, s%d" % (sT0, sT0, sH))
    A("s_lshl_b32 s%d, s%d, 21" % (sT0, sT0))
    A("s_lshl_b32 s%d, s%d, 19" % (sT1, sC))
    A("s_add_u32 s%d, s%d, s%d" % (sT0, sT0, sT1))
    if INTERLEAVE:
        A("s_lshl_b32 s%d, s%d, 10" % (sT1, sWAVE))
    else:
        A("s_lshl_b32 s%d, s%d, 15" % (sT1, sWAVE))
    A("s_add_u32 s%d, s%d, s%d" % (sT0, sT0, sT1))
    A("v_add_u32 %s, s%d, %s" % (vKV, sT0, vA))
    A("s_mul_i32 s%d, s%d, %d" % (sROT, sWAVE, CFG["RB"]))
    A("s_mul_i32 s%d, s2, %d" % (sT1, CFG["RA"]))
    A("s_add_u32 s%d, s%d, s%d" % (sROT, sROT, sT1))
    A("s_and_b32 s%d, s%d, 31" % (sROT, sROT))
    A("s_lshl_b32 s%d, s%d, %d" % (sROT, sROT, 14 if INTERLEAVE else 10))

    def issue(n):
        if n < 64:
            i = n & 31
            srdn = sK if n < 32 else sV
            dst = RING + 4 * (n % D)
            if INTERLEAVE:
                so, io = i * 16384, 0
            else:
                so, io = (i >> 2) * 4096, (i & 3) * 1024
            if CFG["ROT"]:
                A("buffer_load_dwordx4 %s, %s, %s, s%d offen%s" % (vr(dst, 4), vKV, sr(srdn, 4), sROT, (NT if CFG["KNT" if n < 32 else "VNT"] else "")))
                if INTERLEAVE:
                    A("s_add_u32 s%d, s%d, 0x4000" % (sROT, sROT))
                    A("s_and_b32 s%d, s%d, 0x7ffff" % (sROT, sROT))
                else:
                    A("s_add_u32 s%d, s%d, 0x400" % (sROT, sROT))
                    A("s_and_b32 s%d, s%d, 0x7fff" % (sROT, sROT))
            else:
                A("s_mov_b32 s%d, 0x%x" % (sOFF, so))
                A("buffer_load_dwordx4 %s, %s, %s, s%d offen offset:%d%s" % (vr(dst, 4), vKV, sr(srdn, 4), sOFF, io, NT))
        else:
            r = n - 64
            if r == 0:
                A("s_lshl_b32 s%d, s%d, 17" % (sT0, sH))
                A("s_lshl_b32 s%d, s%d, 13" % (sT1, sWAVE))
                A("s_add_u32 s%d, s%d, s%d" % (sT0, sT0, sT1))
                A("v_lshlrev_b32 %s, 4, %s" % (vA, vLANE))
                A("v_add_u32 %s, s%d, %s" % (vA, sT0, vA))
            A("s_mov_b32 s%d, 0x%x" % (sOFF, (r >> 2) * 4096))
            A("buffer_load_dwordx4 %s, %s, %s, s%d offen offset:%d%s" % (vr(WQ + 4 * r, 4), vA, sr(sWO, 4), sOFF, (r & 3) * 1024, WNT))

    E = min(CFG["E"], D)
    TW = CFG["TW"]
    if TW:
        A("buffer_load_dword v16, %s, %s, 0 offen nt" % (vKV, sr(sV, 4)))
        A("s_lshl_b32 s%d, s2, 11" % sT0)
        A("v_mov_b32 v17, s%d" % sT0)
        A("buffer_load_dword v17, v17, %s, 0 offen" % sr(sWS, 4))
        A("s_lshl_b32 s%d, s%d, 17" % (sT0, sH))
        A("v_mov_b32 v18, s%d" % sT0)
        A("buffer_load_dword v18, v18, %s, 0 offen" % sr(sWO, 4))
    if PB:
        A("s_barrier")
    for n in range(E):
        issue(n)
    EWO = CFG["EWO"]
    NTOT = 64 if EWO else 72
    if STAMP == 3:
        A("s_waitcnt vmcnt(0)")
        stamp(3)

    A("s_waitcnt vmcnt(%d)" % (E + 1 + 8 + 3 * TW))
    stamp(2)
    A("v_lshlrev_b32 v3, 5, %s" % vLANE)
    layernorm(A, 8, "v3", L_XN)
    layernorm(A, 12, "v3", L_XN + 2048)
    A("s_waitcnt lgkmcnt(0)")

    stamp(2)
    A("s_and_b32 s%d, s%d, 7" % (sT0, sWAVE))
    A("s_lshl_b32 s%d, s%d, 8" % (sT0, sT0))
    A("v_lshlrev_b32 v3, 2, %s" % vLANE)
    A("v_add_u32 v3, s%d, v3" % sT0)
    A("ds_read_b32 v8, v3 offset:%d" % (L_XN))
    A("ds_read_b32 v9, v3 offset:%d" % (L_XN + 2048))
    A("s_waitcnt lgkmcnt(0)")
    A("v_lshrrev_b32 v10, 16, v8")
    A("v_lshrrev_b32 v11, 16, v9")
    A("s_waitcnt vmcnt(%d)" % E)
    FA = [v(12 + i) for i in range(16)]
    for b in range(2):
        for k in range(4):
            A("v_dot2_f32_bf16 %s, v%d, v%d, 0" % (FA[b * 8 + 2 * k], 28 + k, 10 + b))
            A("v_dot2_f32_bf16 %s, v%d, v%d, 0" % (FA[b * 8 + 2 * k + 1], 28 + k, 8 + b))
    for i in range(0, 16, 2):
        A("v_permlane32_swap_b32 %s, %s" % (FA[i], FA[i + 1]))
    for i in range(0, 16, 2):
        A("v_add_f32 %s, %s, %s" % (FA[i], FA[i], FA[i + 1]))
    for i in range(0, 16, 4):
        A("v_permlane16_swap_b32 %s, %s" % (FA[i], FA[i + 2]))
    for i in range(0, 16, 4):
        A("v_add_f32 %s, %s, %s" % (FA[i], FA[i], FA[i + 2]))
    S = [FA[0], FA[4], FA[8], FA[12]]
    U0, U1, Z = "v32", "v33", "v34"
    A("v_add_f32_dpp %s, %s, %s row_ror:8 row_mask:0xf bank_mask:0x3" % (U0, S[0], S[0]))
    A("v_add_f32_dpp %s, %s, %s row_ror:8 row_mask:0xf bank_mask:0xc" % (U0, S[1], S[1]))
    A("v_add_f32_dpp %s, %s, %s row_ror:8 row_mask:0xf bank_mask:0x3" % (U1, S[2], S[2]))
    A("v_add_f32_dpp %s, %s, %s row_ror:8 row_mask:0xf bank_mask:0xc" % (U1, S[3], S[3]))
    A("v_add_f32_dpp %s, %s, %s row_half_mirror row_mask:0xf bank_mask:0x5" % (Z, U0, U0))
    A("v_add_f32_dpp %s, %s, %s row_half_mirror row_mask:0xf bank_mask:0xa" % (Z, U1, U1))
    A("v_add_f32_dpp %s, %s, %s quad_perm:[1,0,3,2] %s" % (Z, Z, Z, DPPF))
    A("v_add_f32_dpp %s, %s, %s quad_perm:[2,3,0,1] %s" % (Z, Z, Z, DPPF))
    A("v_bfe_u32 v35, %s, 2, 1" % vLANE)
    A("v_bfe_u32 v38, %s, 3, 1" % vLANE)
    A("v_lshl_add_u32 v35, v35, 1, v38")
    A("v_and_b32 v38, 7, %s" % vDI)
    A("v_lshl_add_u32 v35, v35, 2, v38")
    A("s_lshl_b32 s%d, s%d, 6" % (sT0, sWAVE))
    A("v_lshlrev_b32 v35, 2, v35")
    A("v_add_u32 v35, s%d, v35" % sT0)
    A("ds_write_b32 v35, %s offset:%d" % (Z, L_FP))

    stamp(2)
    A("s_lshl_b32 s%d, s%d, 11" % (sT0, sB))
    A("s_lshl_b32 s%d, s%d, 7" % (sT1, sWAVE))
    A("s_add_u32 s%d, s%d, s%d" % (sT0, sT0, sT1))
    A("v_lshlrev_b32 v3, 2, %s" % vG)
    A("v_add_u32 v3, s%d, v3" % sT0)
    for i in range(8):
        A("ds_read_b32 v%d, v3 offset:%d" % (16 + i, L_XN + 16 * i))
    A("s_waitcnt lgkmcnt(0)")
    for i in range(8):
        A("v_lshrrev_b32 v%d, 16, v%d" % (24 + i, 16 + i))
    qa = [v(8 + i) for i in range(8)]
    for i in range(8):
        for k in range(4):
            c0 = "0" if i == 0 else qa[2 * k]
            c1 = "0" if i == 0 else qa[2 * k + 1]
            A("v_dot2_f32_bf16 %s, v%d, v%d, %s" % (qa[2 * k], WQ + 4 * i + k, 24 + i, c0))
            A("v_dot2_f32_bf16 %s, v%d, v%d, %s" % (qa[2 * k + 1], WQ + 4 * i + k, 16 + i, c1))
    rows_merge8(A, qa)
    A("s_lshl_b32 s%d, s%d, 9" % (sT0, sWAVE))
    A("v_lshlrev_b32 v3, 2, %s" % vDI)
    A("v_add_u32 v3, s%d, v3" % sT0)
    A("v_add_u32 v3, 0x%x, v3" % L_QP)
    A("ds_write2_b32 v3, %s, %s offset0:0 offset1:4" % (qa[0], qa[4]))
    A("s_waitcnt lgkmcnt(0)")
    A("s_barrier")
    stamp(2)
    A("v_and_b32 v38, 7, %s" % vLANE)
    A("v_lshrrev_b32 v39, 3, %s" % vLANE)
    A("v_lshlrev_b32 v3, 9, v39")
    A("v_lshl_add_u32 v3, v38, 2, v3")
    A("s_lshl_b32 s%d, s%d, 5" % (sT0, sWAVE))
    A("v_add_u32 v3, s%d, v3" % sT0)
    A("ds_read_b32 v8, v3 offset:%d" % L_QP)
    A("ds_read_b32 v9, v3 offset:%d" % (L_QP + 4096))
    A("s_waitcnt lgkmcnt(0)")
    A("v_add_f32 v8, v8, v9")
    A("v_add_f32_dpp v8, v8, v8 row_ror:8 %s" % DPPF)
    xrow_allreduce(A, "v_add_f32", "v8", "v9")
    A("v_cvt_pk_bf16_f32 v8, v8, v8")
    A("s_lshl_b32 s%d, s%d, 4" % (sT0, sWAVE))
    A("v_lshlrev_b32 v3, 1, v38")
    A("v_add_u32 v3, s%d, v3" % sT0)
    A("ds_write_b16 v3, v8 offset:%d" % L_QB)
    A("s_waitcnt lgkmcnt(0)")
    A("s_barrier")
    A("v_and_b32 v3, 15, %s" % vLANE)
    A("v_lshlrev_b32 v3, 4, v3")
    A("ds_read_b128 %s, v3 offset:%d" % (vr(Q, 4), L_QB))
    for n in range(E, D):
        issue(n)

    A("s_cmp_lg_u32 s%d, 0" % sWAVE)
    A("s_cbranch_scc1 K1_NOFFN")
    A("s_cmp_lg_u32 s%d, 1" % sJV)
    A("s_cbranch_scc1 K1_NOFFN")
    A("s_lshl_b32 s%d, s%d, 13" % (sT0, sJ))
    A("v_lshlrev_b32 v3, 4, %s" % vLANE)
    A("v_add_u32 v3, s%d, v3" % sT0)
    for f in range(8):
        A("s_mov_b32 s%d, 0x%x" % (sOFF, (f >> 2) * 4096))
        A("buffer_load_dwordx4 %s, v3, %s, s%d offen offset:%d%s" % (vr(WQ + 4 * f, 4), sr(sWD, 4), sOFF, (f & 3) * 1024, WNT))
    A("v_lshlrev_b32 v38, 2, %s" % vLANE)
    A("ds_read_b32 v8, v38 offset:%d" % (L_FP))
    A("ds_read_b32 v9, v38 offset:%d" % (L_FP + 256))
    A("ds_read_b32 v10, v38 offset:%d" % (L_FP + 512))
    A("ds_read_b32 v11, v38 offset:%d" % (L_FP + 768))
    A("s_waitcnt lgkmcnt(0)")
    A("v_add_f32 v8, v8, v9")
    A("v_add_f32 v10, v10, v11")
    xrow_allreduce(A, "v_add_f32", "v8", "v9")
    xrow_allreduce(A, "v_add_f32", "v10", "v11")
    rne2(A, "v8", "v10", "v9")
    A("v_mul_f32 v9, v8, v8")
    A("v_mov_b32 v11, 0x3f4c422a")
    A("v_fmac_f32 v11, 0x3d12220c, v9")
    A("v_mul_f32 v11, v11, v8")
    A("v_mul_f32 v11, 0xc038aa3b, v11")
    A("v_exp_f32 v11, v11")
    A("v_add_f32 v11, 1.0, v11")
    A("v_rcp_f32 v11, v11")
    A("v_mul_f32 v8, v8, v11")
    rne1(A, "v8", "v9")
    A("v_mul_f32 v8, v8, v10")
    rne1(A, "v8", "v9")
    for i in range(16):
        A("v_readlane_b32 s%d, v8, %d" % (sHH + i, i))
    for i in range(16):
        A("s_lshr_b32 s%d, s%d, 16" % (sHL + i, sHH + i))
    A("s_waitcnt vmcnt(0)")
    YA = [v(8 + i) for i in range(16)]
    for f in range(8):
        for k in range(4):
            for b in range(2):
                c0 = "0" if f == 0 else YA[b * 8 + 2 * k]
                c1 = "0" if f == 0 else YA[b * 8 + 2 * k + 1]
                A("v_dot2_f32_bf16 %s, v%d, s%d, %s" % (YA[b * 8 + 2 * k], WQ + 4 * f + k, sHL + b * 8 + f, c0))
                A("v_dot2_f32_bf16 %s, v%d, s%d, %s" % (YA[b * 8 + 2 * k + 1], WQ + 4 * f + k, sHH + b * 8 + f, c1))
    A("s_lshl_b32 s%d, s%d, 12" % (sT0, sJ))
    A("s_add_u32 s%d, s%d, 0x%x" % (sT0, sT0, WS_Y))
    A("v_lshlrev_b32 v3, 5, %s" % vLANE)
    A("v_add_u32 v3, s%d, v3" % sT0)
    A("buffer_store_dwordx4 v[8:11], v3, %s, 0 offen" % sr(sWS, 4))
    A("buffer_store_dwordx4 v[12:15], v3, %s, 0 offen offset:16" % sr(sWS, 4))
    A("buffer_store_dwordx4 v[16:19], v3, %s, 0 offen offset:2048" % sr(sWS, 4))
    A("buffer_store_dwordx4 v[20:23], v3, %s, 0 offen offset:2064" % sr(sWS, 4))
    A.label("K1_NOFFN")
    if EWO:
        for m in range(64, 72):
            issue(m)
    A("s_waitcnt lgkmcnt(0)")
    stamp()

    def waitfor(n):
        if CFG["PRIO"] == 1 and n % 16 == 0:
            A("s_setprio %d" % (3 - n // 16))
        if CFG["PRIO"] == 2 and n in (0, 40, 52, 60):
            A("s_setprio %d" % {0: 3, 40: 2, 52: 1, 60: 0}[n])
        if CFG["PRIO"] == 3 and n in (0, 8, 16, 24):
            A("s_setprio %d" % {0: 3, 8: 2, 16: 1, 24: 0}[n])
        outstanding_after = min(n + D - 1, NTOT - 1) - n
        if EWO and n < D:
            outstanding_after += 8
        A("s_waitcnt vmcnt(%d)" % outstanding_after)

    a = [v(AA + i) for i in range(4)]
    for I in range(8):
        for t in range(4):
            n = 4 * I + t
            if LB and n % LB == 0 and n > 0:
                A("s_barrier")
            waitfor(n)
            base = RING + 4 * (n % D)
            for k in range(4 if not CFG["NOCOMP"] else 1):
                c = "0" if k == 0 else a[t]
                A("v_dot2_f32_bf16 %s, v%d, v%d, %s" % (a[t], base + k, Q + k, c))
            if n + D < NTOT:
                issue(n + D)
        for t in range(4):
            A("v_add_f32_dpp %s, %s, %s quad_perm:[1,0,3,2] %s" % (a[t], a[t], a[t], DPPF))
        for t in range(4):
            A("v_add_f32_dpp %s, %s, %s quad_perm:[2,3,0,1] %s" % (a[t], a[t], a[t], DPPF))
        A("v_add_f32_dpp %s, %s, %s row_half_mirror row_mask:0xf bank_mask:0x5" % (vC, a[0], a[0]))
        A("v_add_f32_dpp %s, %s, %s row_half_mirror row_mask:0xf bank_mask:0xa" % (vC, a[1], a[1]))
        A("v_add_f32_dpp %s, %s, %s row_half_mirror row_mask:0xf bank_mask:0x5" % (vD, a[2], a[2]))
        A("v_add_f32_dpp %s, %s, %s row_half_mirror row_mask:0xf bank_mask:0xa" % (vD, a[3], a[3]))
        A("v_add_f32_dpp v%d, %s, %s row_ror:8 row_mask:0xf bank_mask:0x3" % (PL + I, vC, vC))
        A("v_add_f32_dpp v%d, %s, %s row_ror:8 row_mask:0xf bank_mask:0xc" % (PL + I, vD, vD))

    stamp()
    M = [v(PL + i) for i in range(8)]
    T = "v38"
    for i in range(0, 8, 2):
        rne2(A, M[i], M[i + 1], T)
        A("v_mul_f32 %s, %s, %s" % (M[i], SCALE, M[i]))
        A("v_mul_f32 %s, %s, %s" % (M[i + 1], SCALE, M[i + 1]))
        rne2(A, M[i], M[i + 1], T)
    vM, vL = "v40", "v41"
    A("v_max3_f32 %s, %s, %s, %s" % (vM, M[0], M[1], M[2]))
    A("v_max3_f32 %s, %s, %s, %s" % (vM, vM, M[3], M[4]))
    A("v_max3_f32 %s, %s, %s, %s" % (vM, vM, M[5], M[6]))
    A("v_max_f32 %s, %s, %s" % (vM, vM, M[7]))
    A("v_max_f32_dpp %s, %s, %s row_ror:4 %s" % (vM, vM, vM, DPPF))
    A("v_max_f32_dpp %s, %s, %s row_ror:8 %s" % (vM, vM, vM, DPPF))
    xrow_allreduce(A, "v_max_f32", vM, T)
    A("v_mul_f32 v39, %s, %s" % (LOG2E, vM))
    A("s_mov_b32 s%d, %s" % (sT0, LOG2E))
    for i in range(8):
        A("v_fma_f32 %s, %s, s%d, -v39" % (M[i], M[i], sT0))
    for i in range(8):
        A("v_exp_f32 %s, %s" % (M[i], M[i]))
    A("v_add_f32 %s, %s, %s" % (vL, M[0], M[1]))
    A("v_add_f32 %s, %s, %s" % (T, M[2], M[3]))
    A("v_add_f32 v39, %s, %s" % (M[4], M[5]))
    A("v_add_f32 v42, %s, %s" % (M[6], M[7]))
    A("v_add_f32 %s, %s, %s" % (vL, vL, T))
    A("v_add_f32 v39, v39, v42")
    A("v_add_f32 %s, %s, v39" % (vL, vL))
    A("v_add_f32_dpp %s, %s, %s row_ror:4 %s" % (vL, vL, vL, DPPF))
    A("v_add_f32_dpp %s, %s, %s row_ror:8 %s" % (vL, vL, vL, DPPF))
    xrow_allreduce(A, "v_add_f32", vL, T)
    for i in range(0, 8, 2):
        A("v_cvt_pk_bf16_f32 %s, %s, %s" % (T, M[i], M[i + 1]))
        A("v_lshlrev_b32 v%d, 16, %s" % (PH + i, T))
        A("v_and_b32 v%d, %s, %s" % (PH + i + 1, HI, T))
        A("v_and_b32 v%d, 0xffff, %s" % (PL + i, T))
        A("v_lshrrev_b32 v%d, 16, %s" % (PL + i + 1, T))
    acc = [v(ACC + i) for i in range(8)]
    for i in range(8):
        A("v_mov_b32 %s, 0" % acc[i])

    for i in range(32):
        n = 32 + i
        I, qd = i >> 2, i & 3
        if LB and n % LB == 0:
            A("s_barrier")
        waitfor(n)
        base = RING + 4 * (n % D)
        for k in range(4 if not CFG["NOCOMP"] else 0):
            A("v_dot2c_f32_bf16_dpp %s, v%d, v%d row_newbcast:%d %s" % (acc[2 * k], PL + I, base + k, 4 * qd, DPPF))
            A("v_dot2c_f32_bf16_dpp %s, v%d, v%d row_newbcast:%d %s" % (acc[2 * k + 1], PH + I, base + k, 4 * qd, DPPF))
        if n + D < NTOT:
            issue(n + D)

    for m in range(64 + D, NTOT):
        issue(m)
    stamp()
    rows_merge8(A, acc)
    A("s_lshl_b32 s%d, s%d, 9" % (sT0, sWAVE))
    A("v_lshlrev_b32 v3, 2, %s" % vDI)
    A("v_add_u32 v3, s%d, v3" % sT0)
    A("v_add_u32 v3, 0x%x, v3" % L_OP)
    A("ds_write2_b32 v3, %s, %s offset0:0 offset1:4" % (acc[0], acc[4]))
    A("s_lshl_b32 s%d, s%d, 3" % (sT0, sWAVE))
    A("v_mov_b32 v3, s%d" % sT0)
    A("ds_write_b64 v3, v[40:41] offset:%d" % L_ML)
    A("s_waitcnt lgkmcnt(0)")
    A("s_barrier")
    A("v_and_b32 v38, 7, %s" % vLANE)
    A("v_lshrrev_b32 v39, 3, %s" % vLANE)
    A("v_lshlrev_b32 v3, 3, v39")
    A("ds_read_b64 v[16:17], v3 offset:%d" % L_ML)
    A("ds_read_b64 v[18:19], v3 offset:%d" % (L_ML + 64))
    A("v_lshlrev_b32 v3, 9, v39")
    A("v_lshl_add_u32 v3, v38, 2, v3")
    A("s_lshl_b32 s%d, s%d, 5" % (sT0, sWAVE))
    A("v_add_u32 v3, s%d, v3" % sT0)
    A("ds_read_b32 v20, v3 offset:%d" % L_OP)
    A("ds_read_b32 v21, v3 offset:%d" % (L_OP + 4096))
    A("s_waitcnt lgkmcnt(0)")
    A("v_max_f32 v22, v16, v18")
    A("v_max_f32_dpp v22, v22, v22 row_ror:8 %s" % DPPF)
    xrow_allreduce(A, "v_max_f32", "v22", "v23")
    A("v_sub_f32 v16, v16, v22")
    A("v_sub_f32 v18, v18, v22")
    A("v_mul_f32 v16, %s, v16" % LOG2E)
    A("v_mul_f32 v18, %s, v18" % LOG2E)
    A("v_exp_f32 v16, v16")
    A("v_exp_f32 v18, v18")
    A("v_mul_f32 v24, v16, v20")
    A("v_mul_f32 v23, v16, v17")
    A("v_fmac_f32 v24, v18, v21")
    A("v_fmac_f32 v23, v18, v19")
    A("v_add_f32_dpp v24, v24, v24 row_ror:8 %s" % DPPF)
    A("v_add_f32_dpp v23, v23, v23 row_ror:8 %s" % DPPF)
    xrow_allreduce(A, "v_add_f32", "v24", "v25")
    xrow_allreduce(A, "v_add_f32", "v23", "v25")
    A("s_cmp_lg_u32 s%d, 0" % sWAVE)
    A("s_cbranch_scc1 K1_NOML")
    A("s_lshl_b32 s%d, s2, 3" % sT0)
    A("s_add_u32 s%d, s%d, 0x%x" % (sT0, sT0, WS_ML))
    A("v_mov_b32 v3, s%d" % sT0)
    A("buffer_store_dwordx2 v[22:23], v3, %s, 0 offen" % sr(sWS, 4))
    A.label("K1_NOML")
    A("s_waitcnt vmcnt(0)")
    for r in range(8):
        for k in range(4):
            A("v_lshlrev_b32 v26, 16, v%d" % (WQ + 4 * r + k))
            A("v_and_b32 v27, %s, v%d" % (HI, WQ + 4 * r + k))
            op = "v_mul_f32_dpp" if r == 0 else "v_fmac_f32_dpp"
            A("%s %s, v24, v26 row_newbcast:%d %s" % (op, acc[2 * k], r, DPPF))
            A("%s %s, v24, v27 row_newbcast:%d %s" % (op, acc[2 * k + 1], r, DPPF))
    A("s_lshl_b32 s%d, s%d, 11" % (sT0, sWAVE))
    A("v_lshlrev_b32 v3, 5, %s" % vLANE)
    A("v_add_u32 v3, s%d, v3" % sT0)
    A("ds_write_b128 v3, v[8:11] offset:%d" % L_TP)
    A("ds_write_b128 v3, v[12:15] offset:%d" % (L_TP + 16))
    A("s_waitcnt lgkmcnt(0)")
    A("s_barrier")
    if STAMP:
        stamp()
        A("s_waitcnt lgkmcnt(0)")
        A("s_lshl_b32 s%d, s2, 4" % sT0)
        A("s_add_u32 s%d, s%d, s%d" % (sT0, sT0, sWAVE))
        A("s_lshl_b32 s%d, s%d, 5" % (sT0, sT0))
        A("s_add_u32 s%d, s%d, 0x1c0000" % (sT0, sT0))
        A("v_mov_b32 v3, s%d" % sT0)
        for i in range(5):
            A("v_mov_b32 v%d, s%d" % (16 + i, 4 + 2 * i))
        A("buffer_store_dwordx4 v[16:19], v3, %s, 0 offen" % sr(sWS, 4))
        A("buffer_store_dword v20, v3, %s, 0 offen offset:16" % sr(sWS, 4))
    A("s_cmp_ge_u32 s%d, 8" % sWAVE)
    A("s_cbranch_scc1 K1_END")
    A("v_lshlrev_b32 v3, 2, %s" % vTID)
    for i in range(16):
        A("ds_read_b32 v%d, v3 offset:%d" % (16 + i, L_TP + 2048 * i))
    A("s_waitcnt lgkmcnt(0)")
    for i in range(8):
        A("v_add_f32 v%d, v%d, v%d" % (16 + i, 16 + i, 24 + i))
    for i in range(4):
        A("v_add_f32 v%d, v%d, v%d" % (16 + i, 16 + i, 20 + i))
    A("v_add_f32 v16, v16, v18")
    A("v_add_f32 v17, v17, v19")
    A("v_add_f32 v16, v16, v17")
    A("s_lshl_b32 s%d, s2, 11" % sT0)
    A("v_add_u32 v3, s%d, v3" % sT0)
    A("buffer_store_dword v16, v3, %s, 0 offen" % sr(sWS, 4))
    A.label("K1_END")
    A("s_endpgm")
    return A.text()


def gen_k2():
    A = Asm()
    sT, sY, sX, sO = 28, 32, 36, 40
    sB, sCS, sT0, sT1 = 44, 45, 46, 47
    A("s_cmp_ge_u32 s2, 64")
    A("s_cbranch_scc1 K2_END")
    A("s_load_dwordx2 s[4:5], s[0:1], 0")
    A("s_load_dwordx2 s[6:7], s[0:1], 72")
    A("s_load_dwordx2 s[8:9], s[0:1], 88")
    A("s_lshr_b32 s%d, s2, 5" % sB)
    A("s_and_b32 s%d, s2, 31" % sCS)
    A("v_and_b32 v1, 3, v0")
    A("v_lshrrev_b32 v2, 2, v0")
    A("s_waitcnt lgkmcnt(0)")
    srd(A, sT, 8, WS_Y)
    srd(A, sY, 8, WS_Y + NFFN * 4096)
    srd(A, sX, 4, 2048)
    srd(A, sO, 6, 2048)
    A("s_lshl_b32 s%d, s%d, 18" % (sT0, sB))
    A("s_lshl_b32 s%d, s%d, 6" % (sT1, sCS))
    A("s_add_u32 s%d, s%d, s%d" % (sT0, sT0, sT1))
    A("v_lshlrev_b32 v3, 11, v2")
    A("v_lshl_add_u32 v3, v1, 4, v3")
    A("v_add_u32 v4, s%d, v3" % sT0)
    A("s_mov_b32 s48, 0x20000")
    A("buffer_load_dwordx4 v[8:11], v4, %s, 0 offen" % sr(sT, 4))
    A("buffer_load_dwordx4 v[12:15], v4, %s, s48 offen" % sr(sT, 4))
    A("v_and_b32 v5, 31, v2")
    A("v_lshlrev_b32 v5, 3, v5")
    A("s_lshl_b32 s%d, s%d, 10" % (sT0, sB))
    A("s_add_u32 s%d, s%d, 0x%x" % (sT0, sT0, WS_ML))
    A("v_add_u32 v5, s%d, v5" % sT0)
    for c in range(4):
        A("buffer_load_dwordx2 v[%d:%d], v5, %s, 0 offen offset:%d" % (16 + 2 * c, 17 + 2 * c, sr(sT, 4), 256 * c))
    A("s_lshl_b32 s%d, s%d, 11" % (sT0, sB))
    A("s_add_u32 s%d, s%d, s%d" % (sT0, sT0, sT1))
    A("s_add_u32 s%d, s%d, 0x%x" % (sT0, sT0, WS_Y))
    A("v_lshlrev_b32 v3, 12, v2")
    A("v_lshl_add_u32 v3, v1, 4, v3")
    A("v_add_u32 v4, s%d, v3" % sT0)
    for i in range(3):
        A("s_mov_b32 s48, 0x%x" % (i * 64 * 4096))
        A("buffer_load_dwordx4 v[%d:%d], v4, %s, s48 offen" % (24 + 4 * i, 27 + 4 * i, sr(sY, 4)))
    A("s_lshl_b32 s%d, s%d, 10" % (sT0, sB))
    A("s_lshl_b32 s%d, s%d, 5" % (sT1, sCS))
    A("s_add_u32 s%d, s%d, s%d" % (sT0, sT0, sT1))
    A("v_and_b32 v6, 15, v0")
    A("v_lshlrev_b32 v6, 1, v6")
    A("v_add_u32 v6, s%d, v6" % sT0)
    A("buffer_load_ushort v7, v6, %s, 0 offen" % sr(sX, 4))
    A("s_waitcnt vmcnt(4)")
    A("v_max3_f32 v36, v16, v18, v20")
    A("v_max_f32 v36, v36, v22")
    for c in range(4):
        A("v_sub_f32 v%d, v%d, v36" % (16 + 2 * c, 16 + 2 * c))
    for c in range(4):
        A("v_mul_f32 v%d, %s, v%d" % (16 + 2 * c, LOG2E, 16 + 2 * c))
    for c in range(4):
        A("v_exp_f32 v%d, v%d" % (16 + 2 * c, 16 + 2 * c))
    A("v_mul_f32 v36, v16, v17")
    A("v_fmac_f32 v36, v18, v19")
    A("v_fmac_f32 v36, v20, v21")
    A("v_fmac_f32 v36, v22, v23")
    A("v_rcp_f32 v37, v36")
    A("v_fma_f32 v38, -v36, v37, 1.0")
    A("v_fmac_f32 v37, v38, v37")
    A("v_cmp_gt_u32 vcc, 32, v2")
    A("v_cndmask_b32 v38, v18, v16, vcc")
    A("v_cndmask_b32 v39, v22, v20, vcc")
    A("v_mul_f32 v38, v38, v37")
    A("v_mul_f32 v39, v39, v37")
    for k in range(4):
        A("v_mul_f32 v%d, v38, v%d" % (8 + k, 8 + k))
    for k in range(4):
        A("v_fmac_f32 v%d, v39, v%d" % (8 + k, 12 + k))
    A("s_waitcnt vmcnt(1)")
    for k in range(4):
        A("v_add_f32 v%d, v%d, v%d" % (12 + k, 24 + k, 28 + k))
    for k in range(4):
        A("v_add_f32 v%d, v%d, v%d" % (12 + k, 12 + k, 32 + k))
    for k in range(8):
        A("v_add_f32_dpp v%d, v%d, v%d row_ror:4 %s" % (8 + k, 8 + k, 8 + k, DPPF))
    for k in range(8):
        A("v_add_f32_dpp v%d, v%d, v%d row_ror:8 %s" % (8 + k, 8 + k, 8 + k, DPPF))
    rows_merge8(A, [v(8 + i) for i in range(8)])
    A("v_and_b32 v16, 63, v0")
    A("v_lshrrev_b32 v17, 4, v16")
    A("v_and_b32 v18, 1, v17")
    A("v_lshlrev_b32 v18, 1, v18")
    A("v_lshrrev_b32 v17, 1, v17")
    A("v_or_b32 v18, v18, v17")
    A("v_lshl_add_u32 v18, v1, 2, v18")
    A("v_lshrrev_b32 v17, 6, v0")
    A("v_lshl_add_u32 v18, v17, 5, v18")
    A("v_lshlrev_b32 v18, 2, v18")
    A("ds_write_b32 v18, v8")
    A("ds_write_b32 v18, v12 offset:64")
    A("s_waitcnt lgkmcnt(0)")
    A("s_barrier")
    A("v_cmp_gt_u32 vcc, 16, v0")
    A("s_and_saveexec_b64 s[50:51], vcc")
    A("s_cbranch_execz K2_END")
    A("v_lshlrev_b32 v18, 2, v0")
    for w in range(4):
        A("ds_read_b32 v%d, v18 offset:%d" % (20 + w, 128 * w))
        A("ds_read_b32 v%d, v18 offset:%d" % (24 + w, 128 * w + 64))
    A("s_waitcnt lgkmcnt(0)")
    A("v_add_f32 v20, v20, v21")
    A("v_add_f32 v22, v22, v23")
    A("v_add_f32 v24, v24, v25")
    A("v_add_f32 v26, v26, v27")
    A("v_add_f32 v20, v20, v22")
    A("v_add_f32 v24, v24, v26")
    rne2(A, "v20", "v24", "v21")
    A("v_mul_f32 v25, 0xbfb8aa3b, v24")
    A("v_exp_f32 v25, v25")
    A("v_add_f32 v25, 1.0, v25")
    A("v_rcp_f32 v26, v25")
    A("v_mul_f32 v27, v24, v26")
    A("v_fma_f32 v28, -v27, v25, v24")
    A("v_fmac_f32 v27, v28, v26")
    rne1(A, "v27", "v21")
    A("v_mul_f32 v20, v20, v27")
    rne1(A, "v20", "v21")
    A("s_waitcnt vmcnt(0)")
    A("v_lshlrev_b32 v7, 16, v7")
    A("v_add_f32 v20, v20, v7")
    A("v_cvt_pk_bf16_f32 v20, v20, v20")
    A("buffer_store_short v20, v6, %s, 0 offen" % sr(sO, 4))
    A.label("K2_END")
    A("s_endpgm")
    return A.text()


def kd(name, vg, sg):
    return """.amdhsa_kernel %s
  .amdhsa_next_free_vgpr %d
  .amdhsa_next_free_sgpr %d
  .amdhsa_accum_offset %d
  .amdhsa_group_segment_fixed_size 0
  .amdhsa_kernarg_size 96
  .amdhsa_user_sgpr_count 2
  .amdhsa_user_sgpr_kernarg_segment_ptr 1
  .amdhsa_system_sgpr_workgroup_id_x 1
.end_amdhsa_kernel
""" % (name, vg, sg, (vg + 3) // 4 * 4)


def main():
    out = sys.argv[1]
    k1 = NAME + "_kernel"
    k2 = "combine_kernel"
    hdr = open("cdna_kernels/%s.s.ref" % NAME).read().split("; Override launch")[0]
    s = hdr
    s += "; @launch kernel=%s grid=(256,1,1) block=(1024,1,1) lds=%d\n" % (k1, L_TOTAL)
    s += "; @launch kernel=%s grid=(64,1,1) block=(256,1,1) lds=512\n" % k2
    s += '.amdgcn_target "amdgcn-amd-amdhsa--gfx950"\n.text\n'
    for nm, body in ((k1, gen_k1()), (k2, gen_k2())):
        s += ".globl %s\n.p2align 8\n.type %s,@function\n%s:\n" % (nm, nm, nm)
        s += body
    s += '.section .rodata,"a"\n.p2align 6\n'
    s += kd(k1, 128, 102)
    s += ".p2align 6\n"
    s += kd(k2, 40, 56)
    open(out, "w").write(s)


main()
```

```python
import sys
import os
sys.path.insert(0, os.path.dirname(os.path.abspath(__file__)))
from asmlib import Asm

NAME = "recurrent_scan__gqa_block_cached__geglu_ffn__decode"

CFG = dict(D=12, NT=1, INTERLEAVE=False, STAMP=0, PB=0, LB=0, NOFFN=0, NOWQ=0, NOWO=0, CPF=0, E=12, ROT=1, NOCOMP=0, EWO=1, PRIO=0, WNT=0, RA=1, RB=3, KNT=1, VNT=1, TW=0)
for a in sys.argv[2:]:
    k, v = a.split("=")
    CFG[k] = int(v)
D = CFG["D"]
NT = ["", " nt", " sc1 nt", " sc0 sc1 nt", " sc0 sc1", " sc1", " sc0 nt"][CFG["NT"]]
INTERLEAVE = CFG["INTERLEAVE"]
WNT = " nt" if CFG["WNT"] else ""
STAMP = CFG["STAMP"]
PB = CFG["PB"]
LB = CFG["LB"]

LOG2E = "0x3fb8aa3b"
SCALE = "0x3db504f3"
HI = "0xffff0000"

WS_T = 0
WS_ML = 512 * 1024
WS_Y = 1024 * 1024
NFFN = 172

L_XN = 0
L_QP = 4096
L_QB = 12288
L_FP = 12544
L_ML = 13568
L_OP = 13824
L_TP = 22528
L_TOTAL = 55296


def v(n):
    return "v%d" % n


def vr(n, c):
    return "v[%d:%d]" % (n, n + c - 1)


def sr(n, c):
    return "s[%d:%d]" % (n, n + c - 1)


def srd(A, dst, ptr, nbytes):
    A("s_mov_b32 s%d, s%d" % (dst, ptr))
    A("s_and_b32 s%d, s%d, 0xffff" % (dst + 1, ptr + 1))
    if isinstance(nbytes, str):
        A("s_mov_b32 s%d, %s" % (dst + 2, nbytes))
    else:
        A("s_mov_b32 s%d, 0x%x" % (dst + 2, nbytes))
    A("s_mov_b32 s%d, 0x00020000" % (dst + 3))


DPPF = "row_mask:0xf bank_mask:0xf"


def row_allreduce(A, op, x):
    A("%s_dpp %s, %s, %s quad_perm:[1,0,3,2] %s" % (op, x, x, x, DPPF))
    A("%s_dpp %s, %s, %s quad_perm:[2,3,0,1] %s" % (op, x, x, x, DPPF))
    A("%s_dpp %s, %s, %s row_half_mirror %s" % (op, x, x, x, DPPF))
    A("%s_dpp %s, %s, %s row_mirror %s" % (op, x, x, x, DPPF))


def xrow_allreduce(A, op, x, t):
    A("v_mov_b32 %s, %s" % (t, x))
    A("v_permlane16_swap_b32 %s, %s" % (x, t))
    A("%s %s, %s, %s" % (op, x, x, t))
    A("v_mov_b32 %s, %s" % (t, x))
    A("v_permlane32_swap_b32 %s, %s" % (x, t))
    A("%s %s, %s, %s" % (op, x, x, t))


def rows_merge8(A, a):
    for i in range(0, 8, 2):
        A("v_permlane32_swap_b32 %s, %s" % (a[i], a[i + 1]))
    for i in range(0, 8, 2):
        A("v_add_f32 %s, %s, %s" % (a[i], a[i], a[i + 1]))
    A("v_permlane16_swap_b32 %s, %s" % (a[0], a[2]))
    A("v_permlane16_swap_b32 %s, %s" % (a[4], a[6]))
    A("v_add_f32 %s, %s, %s" % (a[0], a[0], a[2]))
    A("v_add_f32 %s, %s, %s" % (a[4], a[4], a[6]))


def rne2(A, a, b, t):
    A("v_cvt_pk_bf16_f32 %s, %s, %s" % (t, a, b))
    A("v_lshlrev_b32 %s, 16, %s" % (a, t))
    A("v_and_b32 %s, %s, %s" % (b, HI, t))


def rne1(A, a, t):
    A("v_cvt_pk_bf16_f32 %s, %s, %s" % (t, a, a))
    A("v_lshlrev_b32 %s, 16, %s" % (a, t))


def layernorm(A, X, vaddr, off):
    f = [v(32 + i) for i in range(8)]
    S, T, MEAN, R = "v40", "v41", "v42", "v43"
    for k in range(4):
        A("v_lshlrev_b32 %s, 16, v%d" % (f[2 * k], X + k))
        A("v_and_b32 %s, %s, v%d" % (f[2 * k + 1], HI, X + k))
    A("v_add_f32 %s, %s, %s" % (S, f[0], f[1]))
    A("v_add_f32 %s, %s, %s" % (T, f[2], f[3]))
    A("v_add_f32 %s, %s, %s" % (R, f[4], f[5]))
    A("v_add_f32 %s, %s, %s" % (MEAN, f[6], f[7]))
    A("v_add_f32 %s, %s, %s" % (S, S, T))
    A("v_add_f32 %s, %s, %s" % (R, R, MEAN))
    A("v_add_f32 %s, %s, %s" % (S, S, R))
    row_allreduce(A, "v_add_f32", S)
    xrow_allreduce(A, "v_add_f32", S, T)
    A("v_mul_f32 %s, 0x3b000000, %s" % (MEAN, S))
    for k in range(8):
        A("v_sub_f32 %s, %s, %s" % (R, f[k], MEAN))
        if k == 0:
            A("v_mul_f32 %s, %s, %s" % (S, R, R))
        else:
            A("v_fmac_f32 %s, %s, %s" % (S, R, R))
    row_allreduce(A, "v_add_f32", S)
    xrow_allreduce(A, "v_add_f32", S, T)
    A("v_mul_f32 %s, 0x3b000000, %s" % (S, S))
    rne2(A, MEAN, S, T)
    A("v_add_f32 %s, 0x3727c5ac, %s" % (S, S))
    rne1(A, S, T)
    A("v_sqrt_f32 %s, %s" % (S, S))
    rne1(A, S, T)
    A("v_rcp_f32 %s, %s" % (R, S))
    Q0, Q1 = "v44", "v45"
    for k in range(0, 8, 2):
        A("v_sub_f32 %s, %s, %s" % (f[k], f[k], MEAN))
        A("v_sub_f32 %s, %s, %s" % (f[k + 1], f[k + 1], MEAN))
        rne2(A, f[k], f[k + 1], T)
        A("v_mul_f32 %s, %s, %s" % (Q0, f[k], R))
        A("v_mul_f32 %s, %s, %s" % (Q1, f[k + 1], R))
        A("v_fma_f32 %s, -%s, %s, %s" % (f[k], Q0, S, f[k]))
        A("v_fma_f32 %s, -%s, %s, %s" % (f[k + 1], Q1, S, f[k + 1]))
        A("v_fma_f32 %s, %s, %s, %s" % (f[k], f[k], R, Q0))
        A("v_fma_f32 %s, %s, %s, %s" % (f[k + 1], f[k + 1], R, Q1))
        rne2(A, f[k], f[k + 1], T)
    A("ds_write_b128 %s, v[32:35] offset:%d" % (vaddr, off))
    A("ds_write_b128 %s, v[36:39] offset:%d" % (vaddr, off + 16))


def gen_k1():
    A = Asm()
    sK, sV, sWQ, sWO, sX, sF, sWD, sWS = 28, 32, 36, 40, 44, 48, 52, 56
    sWAVE, sH, sB, sC, sJ, sJV, sT0, sT1 = 60, 61, 62, 63, 64, 65, 66, 67
    sHH, sHL = 68, 84
    sOFF = 100
    sROT = 101
    vTID, vLANE, vKV, vA = "v0", "v1", "v2", "v3"
    Q = 4
    ACC = 8
    PL, PH = 16, 24
    AA = 32
    vC, vD = "v36", "v37"
    vDI = "v46"
    vG = "v47"
    WQ = 48
    RING = 80
    assert RING + 4 * D <= 128

    A("s_cmp_ge_u32 s2, 256")
    A("s_cbranch_scc1 K1_END")
    A("s_load_dwordx16 s[4:19], s[0:1], 0")
    A("s_load_dwordx8 s[20:27], s[0:1], 64")
    if CFG["CPF"]:
        A("s_getpc_b64 s[28:29]")
        A("v_lshlrev_b32 v1, 4, v0")
        A("global_load_dwordx4 v[124:127], v1, s[28:29]")
    A("v_and_b32 %s, 63, %s" % (vLANE, vTID))
    A("v_lshrrev_b32 v3, 6, %s" % vTID)
    A("v_readfirstlane_b32 s%d, v3" % sWAVE)
    A("s_and_b32 s%d, s2, 31" % sH)
    A("s_lshr_b32 s%d, s2, 7" % sB)
    A("s_bfe_u32 s%d, s2, 0x20005" % sC)
    A("s_and_b32 s%d, s2, 0xc0" % sJ)
    A("s_and_b32 s%d, s2, 7" % sT0)
    A("s_lshl_b32 s%d, s%d, 3" % (sT0, sT0))
    A("s_add_u32 s%d, s%d, s%d" % (sJ, sJ, sT0))
    A("s_bfe_u32 s%d, s2, 0x30003" % sT0)
    A("s_add_u32 s%d, s%d, s%d" % (sJ, sJ, sT0))
    A("s_cmp_lt_u32 s%d, %d" % (sJ, NFFN))
    A("s_cselect_b32 s%d, %d, 0" % (sJV, 0 if CFG["NOFFN"] else 1))
    A("v_lshrrev_b32 %s, 4, %s" % (vG, vLANE))
    A("v_and_b32 v38, 1, %s" % vG)
    A("v_lshlrev_b32 v38, 1, v38")
    A("v_lshrrev_b32 v39, 1, %s" % vG)
    A("v_or_b32 v38, v38, v39")
    A("v_and_b32 v39, 15, %s" % vLANE)
    A("v_lshl_add_u32 %s, v39, 3, v38" % vDI)
    A("s_waitcnt lgkmcnt(0)")
    srd(A, sX, 4, 2048)
    srd(A, sK, 6, 0x8000000)
    srd(A, sV, 8, 0x8000000)
    srd(A, sWQ, 10, 0 if CFG["NOWQ"] else 0x400000)
    srd(A, sWO, 12, 0 if CFG["NOWO"] else 0x400000)
    srd(A, sWD, 20, 1376 * 1024)
    srd(A, sWS, 26, 0x200000)
    A("s_cmp_lt_u32 s%d, 8" % sWAVE)
    A("s_cselect_b32 s%d, s16, s18" % sF)
    A("s_cselect_b32 s%d, s17, s19" % (sF + 1))
    A("s_and_b32 s%d, s%d, 0xffff" % (sF + 1, sF + 1))
    A("s_cmp_eq_u32 s%d, 1" % sJV)
    A("s_cselect_b32 s%d, 0x%x, 0" % (sF + 2, 512 * 2752))
    A("s_mov_b32 s%d, 0x00020000" % (sF + 3))

    nst = [0]
    def stamp(level=1):
        if (STAMP == 1 and level == 1) or (STAMP == 2 and level in (0, 2)) or (STAMP and level == 0) or (STAMP == 3 and level == 3):
            A("s_memrealtime s[%d:%d]" % (4 + 2 * nst[0], 5 + 2 * nst[0]))
            nst[0] += 1
    stamp(0)
    A("v_lshlrev_b32 %s, 4, %s" % (vA, vLANE))
    A("buffer_load_dwordx4 v[8:11], %s, %s, 0 offen" % (vA, sr(sX, 4)))
    A("buffer_load_dwordx4 v[12:15], %s, %s, 0 offen offset:1024" % (vA, sr(sX, 4)))
    if STAMP == 3:
        A("s_waitcnt vmcnt(0)")
        stamp(3)
    A("s_lshl_b32 s%d, s%d, 18" % (sT0, sWAVE))
    A("s_lshl_b32 s%d, s%d, 8" % (sT1, sH))
    A("s_add_u32 s%d, s%d, s%d" % (sT0, sT0, sT1))
    A("v_lshlrev_b32 v38, 13, %s" % vG)
    A("v_lshl_add_u32 v38, v39, 4, v38")
    A("v_add_u32 v38, s%d, v38" % sT0)
    for i in range(8):
        A("s_mov_b32 s%d, 0x%x" % (sOFF, i * 32768))
        A("buffer_load_dwordx4 %s, v38, %s, s%d offen%s" % (vr(WQ + 4 * i, 4), sr(sWQ, 4), sOFF, WNT))
    if STAMP == 3:
        A("s_waitcnt vmcnt(0)")
        stamp(3)
    A("s_and_b32 s%d, s%d, 7" % (sT0, sWAVE))
    A("s_lshl_b32 s%d, s%d, 6" % (sT0, sT0))
    A("v_add_u32 v38, s%d, %s" % (sT0, vLANE))
    A("s_movk_i32 s%d, 2752" % sT1)
    A("v_mul_lo_u32 v38, v38, s%d" % sT1)
    A("s_lshl_b32 s%d, s%d, 4" % (sT1, sJ))
    A("v_add_u32 v38, s%d, v38" % sT1)
    A("buffer_load_dwordx4 v[28:31], v38, %s, 0 offen%s" % (sr(sF, 4), WNT))
    if STAMP == 3:
        A("s_waitcnt vmcnt(0)")
        stamp(3)
    A("s_lshl_b32 s%d, s%d, 5" % (sT0, sB))
    A("s_add_u32 s%d, s%d, s%d" % (sT0, sT0, sH))
    A("s_lshl_b32 s%d, s%d, 21" % (sT0, sT0))
    A("s_lshl_b32 s%d, s%d, 19" % (sT1, sC))
    A("s_add_u32 s%d, s%d, s%d" % (sT0, sT0, sT1))
    if INTERLEAVE:
        A("s_lshl_b32 s%d, s%d, 10" % (sT1, sWAVE))
    else:
        A("s_lshl_b32 s%d, s%d, 15" % (sT1, sWAVE))
    A("s_add_u32 s%d, s%d, s%d" % (sT0, sT0, sT1))
    A("v_add_u32 %s, s%d, %s" % (vKV, sT0, vA))
    A("s_mul_i32 s%d, s%d, %d" % (sROT, sWAVE, CFG["RB"]))
    A("s_mul_i32 s%d, s2, %d" % (sT1, CFG["RA"]))
    A("s_add_u32 s%d, s%d, s%d" % (sROT, sROT, sT1))
    A("s_and_b32 s%d, s%d, 31" % (sROT, sROT))
    A("s_lshl_b32 s%d, s%d, 10" % (sROT, sROT))

    def issue(n):
        if n < 64:
            i = n & 31
            srdn = sK if n < 32 else sV
            dst = RING + 4 * (n % D)
            if INTERLEAVE:
                so, io = i * 16384, 0
            else:
                so, io = (i >> 2) * 4096, (i & 3) * 1024
            if CFG["ROT"]:
                A("buffer_load_dwordx4 %s, %s, %s, s%d offen%s" % (vr(dst, 4), vKV, sr(srdn, 4), sROT, (NT if CFG["KNT" if n < 32 else "VNT"] else "")))
                A("s_add_u32 s%d, s%d, 0x400" % (sROT, sROT))
                A("s_and_b32 s%d, s%d, 0x7fff" % (sROT, sROT))
            else:
                A("s_mov_b32 s%d, 0x%x" % (sOFF, so))
                A("buffer_load_dwordx4 %s, %s, %s, s%d offen offset:%d%s" % (vr(dst, 4), vKV, sr(srdn, 4), sOFF, io, NT))
        else:
            r = n - 64
            if r == 0:
                A("s_lshl_b32 s%d, s%d, 17" % (sT0, sH))
                A("s_lshl_b32 s%d, s%d, 13" % (sT1, sWAVE))
                A("s_add_u32 s%d, s%d, s%d" % (sT0, sT0, sT1))
                A("v_lshlrev_b32 %s, 4, %s" % (vA, vLANE))
                A("v_add_u32 %s, s%d, %s" % (vA, sT0, vA))
            A("s_mov_b32 s%d, 0x%x" % (sOFF, (r >> 2) * 4096))
            A("buffer_load_dwordx4 %s, %s, %s, s%d offen offset:%d%s" % (vr(WQ + 4 * r, 4), vA, sr(sWO, 4), sOFF, (r & 3) * 1024, WNT))

    E = min(CFG["E"], D)
    TW = CFG["TW"]
    if TW:
        A("buffer_load_dword v16, %s, %s, 0 offen nt" % (vKV, sr(sV, 4)))
        A("s_lshl_b32 s%d, s2, 11" % sT0)
        A("v_mov_b32 v17, s%d" % sT0)
        A("buffer_load_dword v17, v17, %s, 0 offen" % sr(sWS, 4))
        A("s_lshl_b32 s%d, s%d, 17" % (sT0, sH))
        A("v_mov_b32 v18, s%d" % sT0)
        A("buffer_load_dword v18, v18, %s, 0 offen" % sr(sWO, 4))
    if PB:
        A("s_barrier")
    for n in range(E):
        issue(n)
    EWO = CFG["EWO"]
    NTOT = 64 if EWO else 72
    if STAMP == 3:
        A("s_waitcnt vmcnt(0)")
        stamp(3)

    A("s_waitcnt vmcnt(%d)" % (E + 1 + 8 + 3 * TW))
    stamp(2)
    A("v_lshlrev_b32 v3, 5, %s" % vLANE)
    layernorm(A, 8, "v3", L_XN)
    layernorm(A, 12, "v3", L_XN + 2048)
    A("s_waitcnt lgkmcnt(0)")

    stamp(2)
    A("s_and_b32 s%d, s%d, 7" % (sT0, sWAVE))
    A("s_lshl_b32 s%d, s%d, 8" % (sT0, sT0))
    A("v_lshlrev_b32 v3, 2, %s" % vLANE)
    A("v_add_u32 v3, s%d, v3" % sT0)
    A("ds_read_b32 v8, v3 offset:%d" % (L_XN))
    A("ds_read_b32 v9, v3 offset:%d" % (L_XN + 2048))
    A("s_waitcnt lgkmcnt(0)")
    A("v_lshrrev_b32 v10, 16, v8")
    A("v_lshrrev_b32 v11, 16, v9")
    A("s_waitcnt vmcnt(%d)" % E)
    FA = [v(12 + i) for i in range(16)]
    for b in range(2):
        for k in range(4):
            A("v_dot2_f32_bf16 %s, v%d, v%d, 0" % (FA[b * 8 + 2 * k], 28 + k, 10 + b))
            A("v_dot2_f32_bf16 %s, v%d, v%d, 0" % (FA[b * 8 + 2 * k + 1], 28 + k, 8 + b))
    for i in range(0, 16, 2):
        A("v_permlane32_swap_b32 %s, %s" % (FA[i], FA[i + 1]))
    for i in range(0, 16, 2):
        A("v_add_f32 %s, %s, %s" % (FA[i], FA[i], FA[i + 1]))
    for i in range(0, 16, 4):
        A("v_permlane16_swap_b32 %s, %s" % (FA[i], FA[i + 2]))
    for i in range(0, 16, 4):
        A("v_add_f32 %s, %s, %s" % (FA[i], FA[i], FA[i + 2]))
    S = [FA[0], FA[4], FA[8], FA[12]]
    U0, U1, Z = "v32", "v33", "v34"
    A("v_add_f32_dpp %s, %s, %s row_ror:8 row_mask:0xf bank_mask:0x3" % (U0, S[0], S[0]))
    A("v_add_f32_dpp %s, %s, %s row_ror:8 row_mask:0xf bank_mask:0xc" % (U0, S[1], S[1]))
    A("v_add_f32_dpp %s, %s, %s row_ror:8 row_mask:0xf bank_mask:0x3" % (U1, S[2], S[2]))
    A("v_add_f32_dpp %s, %s, %s row_ror:8 row_mask:0xf bank_mask:0xc" % (U1, S[3], S[3]))
    A("v_add_f32_dpp %s, %s, %s row_half_mirror row_mask:0xf bank_mask:0x5" % (Z, U0, U0))
    A("v_add_f32_dpp %s, %s, %s row_half_mirror row_mask:0xf bank_mask:0xa" % (Z, U1, U1))
    A("v_add_f32_dpp %s, %s, %s quad_perm:[1,0,3,2] %s" % (Z, Z, Z, DPPF))
    A("v_add_f32_dpp %s, %s, %s quad_perm:[2,3,0,1] %s" % (Z, Z, Z, DPPF))
    A("v_bfe_u32 v35, %s, 2, 1" % vLANE)
    A("v_bfe_u32 v38, %s, 3, 1" % vLANE)
    A("v_lshl_add_u32 v35, v35, 1, v38")
    A("v_and_b32 v38, 7, %s" % vDI)
    A("v_lshl_add_u32 v35, v35, 2, v38")
    A("s_lshl_b32 s%d, s%d, 6" % (sT0, sWAVE))
    A("v_lshlrev_b32 v35, 2, v35")
    A("v_add_u32 v35, s%d, v35" % sT0)
    A("ds_write_b32 v35, %s offset:%d" % (Z, L_FP))

    stamp(2)
    A("s_lshl_b32 s%d, s%d, 11" % (sT0, sB))
    A("s_lshl_b32 s%d, s%d, 7" % (sT1, sWAVE))
    A("s_add_u32 s%d, s%d, s%d" % (sT0, sT0, sT1))
    A("v_lshlrev_b32 v3, 2, %s" % vG)
    A("v_add_u32 v3, s%d, v3" % sT0)
    for i in range(8):
        A("ds_read_b32 v%d, v3 offset:%d" % (16 + i, L_XN + 16 * i))
    A("s_waitcnt lgkmcnt(0)")
    for i in range(8):
        A("v_lshrrev_b32 v%d, 16, v%d" % (24 + i, 16 + i))
    qa = [v(8 + i) for i in range(8)]
    for i in range(8):
        for k in range(4):
            c0 = "0" if i == 0 else qa[2 * k]
            c1 = "0" if i == 0 else qa[2 * k + 1]
            A("v_dot2_f32_bf16 %s, v%d, v%d, %s" % (qa[2 * k], WQ + 4 * i + k, 24 + i, c0))
            A("v_dot2_f32_bf16 %s, v%d, v%d, %s" % (qa[2 * k + 1], WQ + 4 * i + k, 16 + i, c1))
    rows_merge8(A, qa)
    A("s_lshl_b32 s%d, s%d, 9" % (sT0, sWAVE))
    A("v_lshlrev_b32 v3, 2, %s" % vDI)
    A("v_add_u32 v3, s%d, v3" % sT0)
    A("v_add_u32 v3, 0x%x, v3" % L_QP)
    A("ds_write2_b32 v3, %s, %s offset0:0 offset1:4" % (qa[0], qa[4]))
    A("s_waitcnt lgkmcnt(0)")
    A("s_barrier")
    stamp(2)
    A("v_and_b32 v38, 7, %s" % vLANE)
    A("v_lshrrev_b32 v39, 3, %s" % vLANE)
    A("v_lshlrev_b32 v3, 9, v39")
    A("v_lshl_add_u32 v3, v38, 2, v3")
    A("s_lshl_b32 s%d, s%d, 5" % (sT0, sWAVE))
    A("v_add_u32 v3, s%d, v3" % sT0)
    A("ds_read_b32 v8, v3 offset:%d" % L_QP)
    A("ds_read_b32 v9, v3 offset:%d" % (L_QP + 4096))
    A("s_waitcnt lgkmcnt(0)")
    A("v_add_f32 v8, v8, v9")
    A("v_add_f32_dpp v8, v8, v8 row_ror:8 %s" % DPPF)
    xrow_allreduce(A, "v_add_f32", "v8", "v9")
    A("v_cvt_pk_bf16_f32 v8, v8, v8")
    A("s_lshl_b32 s%d, s%d, 4" % (sT0, sWAVE))
    A("v_lshlrev_b32 v3, 1, v38")
    A("v_add_u32 v3, s%d, v3" % sT0)
    A("ds_write_b16 v3, v8 offset:%d" % L_QB)
    A("s_waitcnt lgkmcnt(0)")
    A("s_barrier")
    A("v_and_b32 v3, 15, %s" % vLANE)
    A("v_lshlrev_b32 v3, 4, v3")
    A("ds_read_b128 %s, v3 offset:%d" % (vr(Q, 4), L_QB))
    for n in range(E, D):
        issue(n)

    A("s_cmp_lg_u32 s%d, 0" % sWAVE)
    A("s_cbranch_scc1 K1_NOFFN")
    A("s_cmp_lg_u32 s%d, 1" % sJV)
    A("s_cbranch_scc1 K1_NOFFN")
    A("s_lshl_b32 s%d, s%d, 13" % (sT0, sJ))
    A("v_lshlrev_b32 v3, 4, %s" % vLANE)
    A("v_add_u32 v3, s%d, v3" % sT0)
    for f in range(8):
        A("s_mov_b32 s%d, 0x%x" % (sOFF, (f >> 2) * 4096))
        A("buffer_load_dwordx4 %s, v3, %s, s%d offen offset:%d%s" % (vr(WQ + 4 * f, 4), sr(sWD, 4), sOFF, (f & 3) * 1024, WNT))
    A("v_lshlrev_b32 v38, 2, %s" % vLANE)
    A("ds_read_b32 v8, v38 offset:%d" % (L_FP))
    A("ds_read_b32 v9, v38 offset:%d" % (L_FP + 256))
    A("ds_read_b32 v10, v38 offset:%d" % (L_FP + 512))
    A("ds_read_b32 v11, v38 offset:%d" % (L_FP + 768))
    A("s_waitcnt lgkmcnt(0)")
    A("v_add_f32 v8, v8, v9")
    A("v_add_f32 v10, v10, v11")
    xrow_allreduce(A, "v_add_f32", "v8", "v9")
    xrow_allreduce(A, "v_add_f32", "v10", "v11")
    rne2(A, "v8", "v10", "v9")
    A("v_mul_f32 v9, v8, v8")
    A("v_mov_b32 v11, 0x3f4c422a")
    A("v_fmac_f32 v11, 0x3d12220c, v9")
    A("v_mul_f32 v11, v11, v8")
    A("v_mul_f32 v11, 0xc038aa3b, v11")
    A("v_exp_f32 v11, v11")
    A("v_add_f32 v11, 1.0, v11")
    A("v_rcp_f32 v11, v11")
    A("v_mul_f32 v8, v8, v11")
    rne1(A, "v8", "v9")
    A("v_mul_f32 v8, v8, v10")
    rne1(A, "v8", "v9")
    for i in range(16):
        A("v_readlane_b32 s%d, v8, %d" % (sHH + i, i))
    for i in range(16):
        A("s_lshr_b32 s%d, s%d, 16" % (sHL + i, sHH + i))
    A("s_waitcnt vmcnt(0)")
    YA = [v(8 + i) for i in range(16)]
    for f in range(8):
        for k in range(4):
            for b in range(2):
                c0 = "0" if f == 0 else YA[b * 8 + 2 * k]
                c1 = "0" if f == 0 else YA[b * 8 + 2 * k + 1]
                A("v_dot2_f32_bf16 %s, v%d, s%d, %s" % (YA[b * 8 + 2 * k], WQ + 4 * f + k, sHL + b * 8 + f, c0))
                A("v_dot2_f32_bf16 %s, v%d, s%d, %s" % (YA[b * 8 + 2 * k + 1], WQ + 4 * f + k, sHH + b * 8 + f, c1))
    A("s_lshl_b32 s%d, s%d, 12" % (sT0, sJ))
    A("s_add_u32 s%d, s%d, 0x%x" % (sT0, sT0, WS_Y))
    A("v_lshlrev_b32 v3, 5, %s" % vLANE)
    A("v_add_u32 v3, s%d, v3" % sT0)
    A("buffer_store_dwordx4 v[8:11], v3, %s, 0 offen" % sr(sWS, 4))
    A("buffer_store_dwordx4 v[12:15], v3, %s, 0 offen offset:16" % sr(sWS, 4))
    A("buffer_store_dwordx4 v[16:19], v3, %s, 0 offen offset:2048" % sr(sWS, 4))
    A("buffer_store_dwordx4 v[20:23], v3, %s, 0 offen offset:2064" % sr(sWS, 4))
    A.label("K1_NOFFN")
    if EWO:
        for m in range(64, 72):
            issue(m)
    A("s_waitcnt lgkmcnt(0)")
    stamp()

    def waitfor(n):
        if CFG["PRIO"] == 1 and n % 16 == 0:
            A("s_setprio %d" % (3 - n // 16))
        if CFG["PRIO"] == 2 and n in (0, 40, 52, 60):
            A("s_setprio %d" % {0: 3, 40: 2, 52: 1, 60: 0}[n])
        if CFG["PRIO"] == 3 and n in (0, 8, 16, 24):
            A("s_setprio %d" % {0: 3, 8: 2, 16: 1, 24: 0}[n])
        outstanding_after = min(n + D - 1, NTOT - 1) - n
        if EWO and n < D:
            outstanding_after += 8
        A("s_waitcnt vmcnt(%d)" % outstanding_after)

    a = [v(AA + i) for i in range(4)]
    for I in range(8):
        for t in range(4):
            n = 4 * I + t
            if LB and n % LB == 0 and n > 0:
                A("s_barrier")
            waitfor(n)
            base = RING + 4 * (n % D)
            for k in range(4 if not CFG["NOCOMP"] else 1):
                c = "0" if k == 0 else a[t]
                A("v_dot2_f32_bf16 %s, v%d, v%d, %s" % (a[t], base + k, Q + k, c))
            if n + D < NTOT:
                issue(n + D)
        for t in range(4):
            A("v_add_f32_dpp %s, %s, %s quad_perm:[1,0,3,2] %s" % (a[t], a[t], a[t], DPPF))
        for t in range(4):
            A("v_add_f32_dpp %s, %s, %s quad_perm:[2,3,0,1] %s" % (a[t], a[t], a[t], DPPF))
        A("v_add_f32_dpp %s, %s, %s row_half_mirror row_mask:0xf bank_mask:0x5" % (vC, a[0], a[0]))
        A("v_add_f32_dpp %s, %s, %s row_half_mirror row_mask:0xf bank_mask:0xa" % (vC, a[1], a[1]))
        A("v_add_f32_dpp %s, %s, %s row_half_mirror row_mask:0xf bank_mask:0x5" % (vD, a[2], a[2]))
        A("v_add_f32_dpp %s, %s, %s row_half_mirror row_mask:0xf bank_mask:0xa" % (vD, a[3], a[3]))
        A("v_add_f32_dpp v%d, %s, %s row_ror:8 row_mask:0xf bank_mask:0x3" % (PL + I, vC, vC))
        A("v_add_f32_dpp v%d, %s, %s row_ror:8 row_mask:0xf bank_mask:0xc" % (PL + I, vD, vD))

    stamp()
    M = [v(PL + i) for i in range(8)]
    T = "v38"
    for i in range(0, 8, 2):
        rne2(A, M[i], M[i + 1], T)
        A("v_mul_f32 %s, %s, %s" % (M[i], SCALE, M[i]))
        A("v_mul_f32 %s, %s, %s" % (M[i + 1], SCALE, M[i + 1]))
        rne2(A, M[i], M[i + 1], T)
    vM, vL = "v40", "v41"
    A("v_max3_f32 %s, %s, %s, %s" % (vM, M[0], M[1], M[2]))
    A("v_max3_f32 %s, %s, %s, %s" % (vM, vM, M[3], M[4]))
    A("v_max3_f32 %s, %s, %s, %s" % (vM, vM, M[5], M[6]))
    A("v_max_f32 %s, %s, %s" % (vM, vM, M[7]))
    A("v_max_f32_dpp %s, %s, %s row_ror:4 %s" % (vM, vM, vM, DPPF))
    A("v_max_f32_dpp %s, %s, %s row_ror:8 %s" % (vM, vM, vM, DPPF))
    xrow_allreduce(A, "v_max_f32", vM, T)
    A("v_mul_f32 v39, %s, %s" % (LOG2E, vM))
    A("s_mov_b32 s%d, %s" % (sT0, LOG2E))
    for i in range(8):
        A("v_fma_f32 %s, %s, s%d, -v39" % (M[i], M[i], sT0))
    for i in range(8):
        A("v_exp_f32 %s, %s" % (M[i], M[i]))
    A("v_add_f32 %s, %s, %s" % (vL, M[0], M[1]))
    A("v_add_f32 %s, %s, %s" % (T, M[2], M[3]))
    A("v_add_f32 v39, %s, %s" % (M[4], M[5]))
    A("v_add_f32 v42, %s, %s" % (M[6], M[7]))
    A("v_add_f32 %s, %s, %s" % (vL, vL, T))
    A("v_add_f32 v39, v39, v42")
    A("v_add_f32 %s, %s, v39" % (vL, vL))
    A("v_add_f32_dpp %s, %s, %s row_ror:4 %s" % (vL, vL, vL, DPPF))
    A("v_add_f32_dpp %s, %s, %s row_ror:8 %s" % (vL, vL, vL, DPPF))
    xrow_allreduce(A, "v_add_f32", vL, T)
    for i in range(0, 8, 2):
        A("v_cvt_pk_bf16_f32 %s, %s, %s" % (T, M[i], M[i + 1]))
        A("v_lshlrev_b32 v%d, 16, %s" % (PH + i, T))
        A("v_and_b32 v%d, %s, %s" % (PH + i + 1, HI, T))
        A("v_and_b32 v%d, 0xffff, %s" % (PL + i, T))
        A("v_lshrrev_b32 v%d, 16, %s" % (PL + i + 1, T))
    acc = [v(ACC + i) for i in range(8)]
    for i in range(8):
        A("v_mov_b32 %s, 0" % acc[i])

    for i in range(32):
        n = 32 + i
        I, qd = i >> 2, i & 3
        if LB and n % LB == 0:
            A("s_barrier")
        waitfor(n)
        base = RING + 4 * (n % D)
        for k in range(4 if not CFG["NOCOMP"] else 0):
            A("v_dot2c_f32_bf16_dpp %s, v%d, v%d row_newbcast:%d %s" % (acc[2 * k], PL + I, base + k, 4 * qd, DPPF))
            A("v_dot2c_f32_bf16_dpp %s, v%d, v%d row_newbcast:%d %s" % (acc[2 * k + 1], PH + I, base + k, 4 * qd, DPPF))
        if n + D < NTOT:
            issue(n + D)

    for m in range(64 + D, NTOT):
        issue(m)
    stamp()
    rows_merge8(A, acc)
    A("s_lshl_b32 s%d, s%d, 9" % (sT0, sWAVE))
    A("v_lshlrev_b32 v3, 2, %s" % vDI)
    A("v_add_u32 v3, s%d, v3" % sT0)
    A("v_add_u32 v3, 0x%x, v3" % L_OP)
    A("ds_write2_b32 v3, %s, %s offset0:0 offset1:4" % (acc[0], acc[4]))
    A("s_lshl_b32 s%d, s%d, 3" % (sT0, sWAVE))
    A("v_mov_b32 v3, s%d" % sT0)
    A("ds_write_b64 v3, v[40:41] offset:%d" % L_ML)
    A("s_waitcnt lgkmcnt(0)")
    A("s_barrier")
    A("v_and_b32 v38, 7, %s" % vLANE)
    A("v_lshrrev_b32 v39, 3, %s" % vLANE)
    A("v_lshlrev_b32 v3, 3, v39")
    A("ds_read_b64 v[16:17], v3 offset:%d" % L_ML)
    A("ds_read_b64 v[18:19], v3 offset:%d" % (L_ML + 64))
    A("v_lshlrev_b32 v3, 9, v39")
    A("v_lshl_add_u32 v3, v38, 2, v3")
    A("s_lshl_b32 s%d, s%d, 5" % (sT0, sWAVE))
    A("v_add_u32 v3, s%d, v3" % sT0)
    A("ds_read_b32 v20, v3 offset:%d" % L_OP)
    A("ds_read_b32 v21, v3 offset:%d" % (L_OP + 4096))
    A("s_waitcnt lgkmcnt(0)")
    A("v_max_f32 v22, v16, v18")
    A("v_max_f32_dpp v22, v22, v22 row_ror:8 %s" % DPPF)
    xrow_allreduce(A, "v_max_f32", "v22", "v23")
    A("v_sub_f32 v16, v16, v22")
    A("v_sub_f32 v18, v18, v22")
    A("v_mul_f32 v16, %s, v16" % LOG2E)
    A("v_mul_f32 v18, %s, v18" % LOG2E)
    A("v_exp_f32 v16, v16")
    A("v_exp_f32 v18, v18")
    A("v_mul_f32 v24, v16, v20")
    A("v_mul_f32 v23, v16, v17")
    A("v_fmac_f32 v24, v18, v21")
    A("v_fmac_f32 v23, v18, v19")
    A("v_add_f32_dpp v24, v24, v24 row_ror:8 %s" % DPPF)
    A("v_add_f32_dpp v23, v23, v23 row_ror:8 %s" % DPPF)
    xrow_allreduce(A, "v_add_f32", "v24", "v25")
    xrow_allreduce(A, "v_add_f32", "v23", "v25")
    A("s_cmp_lg_u32 s%d, 0" % sWAVE)
    A("s_cbranch_scc1 K1_NOML")
    A("s_lshl_b32 s%d, s2, 3" % sT0)
    A("s_add_u32 s%d, s%d, 0x%x" % (sT0, sT0, WS_ML))
    A("v_mov_b32 v3, s%d" % sT0)
    A("buffer_store_dwordx2 v[22:23], v3, %s, 0 offen" % sr(sWS, 4))
    A.label("K1_NOML")
    A("s_waitcnt vmcnt(0)")
    for r in range(8):
        for k in range(4):
            A("v_lshlrev_b32 v26, 16, v%d" % (WQ + 4 * r + k))
            A("v_and_b32 v27, %s, v%d" % (HI, WQ + 4 * r + k))
            op = "v_mul_f32_dpp" if r == 0 else "v_fmac_f32_dpp"
            A("%s %s, v24, v26 row_newbcast:%d %s" % (op, acc[2 * k], r, DPPF))
            A("%s %s, v24, v27 row_newbcast:%d %s" % (op, acc[2 * k + 1], r, DPPF))
    A("s_lshl_b32 s%d, s%d, 11" % (sT0, sWAVE))
    A("v_lshlrev_b32 v3, 5, %s" % vLANE)
    A("v_add_u32 v3, s%d, v3" % sT0)
    A("ds_write_b128 v3, v[8:11] offset:%d" % L_TP)
    A("ds_write_b128 v3, v[12:15] offset:%d" % (L_TP + 16))
    A("s_waitcnt lgkmcnt(0)")
    A("s_barrier")
    if STAMP:
        stamp()
        A("s_waitcnt lgkmcnt(0)")
        A("s_lshl_b32 s%d, s2, 4" % sT0)
        A("s_add_u32 s%d, s%d, s%d" % (sT0, sT0, sWAVE))
        A("s_lshl_b32 s%d, s%d, 5" % (sT0, sT0))
        A("s_add_u32 s%d, s%d, 0x1c0000" % (sT0, sT0))
        A("v_mov_b32 v3, s%d" % sT0)
        for i in range(5):
            A("v_mov_b32 v%d, s%d" % (16 + i, 4 + 2 * i))
        A("buffer_store_dwordx4 v[16:19], v3, %s, 0 offen" % sr(sWS, 4))
        A("buffer_store_dword v20, v3, %s, 0 offen offset:16" % sr(sWS, 4))
    A("s_cmp_ge_u32 s%d, 8" % sWAVE)
    A("s_cbranch_scc1 K1_END")
    A("v_lshlrev_b32 v3, 2, %s" % vTID)
    for i in range(16):
        A("ds_read_b32 v%d, v3 offset:%d" % (16 + i, L_TP + 2048 * i))
    A("s_waitcnt lgkmcnt(0)")
    for i in range(8):
        A("v_add_f32 v%d, v%d, v%d" % (16 + i, 16 + i, 24 + i))
    for i in range(4):
        A("v_add_f32 v%d, v%d, v%d" % (16 + i, 16 + i, 20 + i))
    A("v_add_f32 v16, v16, v18")
    A("v_add_f32 v17, v17, v19")
    A("v_add_f32 v16, v16, v17")
    A("s_lshl_b32 s%d, s2, 11" % sT0)
    A("v_add_u32 v3, s%d, v3" % sT0)
    A("buffer_store_dword v16, v3, %s, 0 offen" % sr(sWS, 4))
    A.label("K1_END")
    A("s_endpgm")
    return A.text()


def gen_k2():
    A = Asm()
    sT, sY, sX, sO = 28, 32, 36, 40
    sB, sCS, sT0, sT1 = 44, 45, 46, 47
    A("s_cmp_ge_u32 s2, 64")
    A("s_cbranch_scc1 K2_END")
    A("s_load_dwordx2 s[4:5], s[0:1], 0")
    A("s_load_dwordx2 s[6:7], s[0:1], 72")
    A("s_load_dwordx2 s[8:9], s[0:1], 88")
    A("s_lshr_b32 s%d, s2, 5" % sB)
    A("s_and_b32 s%d, s2, 31" % sCS)
    A("v_and_b32 v1, 3, v0")
    A("v_lshrrev_b32 v2, 2, v0")
    A("s_waitcnt lgkmcnt(0)")
    srd(A, sT, 8, WS_Y)
    srd(A, sY, 8, WS_Y + NFFN * 4096)
    srd(A, sX, 4, 2048)
    srd(A, sO, 6, 2048)
    A("s_lshl_b32 s%d, s%d, 18" % (sT0, sB))
    A("s_lshl_b32 s%d, s%d, 6" % (sT1, sCS))
    A("s_add_u32 s%d, s%d, s%d" % (sT0, sT0, sT1))
    A("v_lshlrev_b32 v3, 11, v2")
    A("v_lshl_add_u32 v3, v1, 4, v3")
    A("v_add_u32 v4, s%d, v3" % sT0)
    A("s_mov_b32 s48, 0x20000")
    A("buffer_load_dwordx4 v[8:11], v4, %s, 0 offen" % sr(sT, 4))
    A("buffer_load_dwordx4 v[12:15], v4, %s, s48 offen" % sr(sT, 4))
    A("v_and_b32 v5, 31, v2")
    A("v_lshlrev_b32 v5, 3, v5")
    A("s_lshl_b32 s%d, s%d, 10" % (sT0, sB))
    A("s_add_u32 s%d, s%d, 0x%x" % (sT0, sT0, WS_ML))
    A("v_add_u32 v5, s%d, v5" % sT0)
    for c in range(4):
        A("buffer_load_dwordx2 v[%d:%d], v5, %s, 0 offen offset:%d" % (16 + 2 * c, 17 + 2 * c, sr(sT, 4), 256 * c))
    A("s_lshl_b32 s%d, s%d, 11" % (sT0, sB))
    A("s_add_u32 s%d, s%d, s%d" % (sT0, sT0, sT1))
    A("s_add_u32 s%d, s%d, 0x%x" % (sT0, sT0, WS_Y))
    A("v_lshlrev_b32 v3, 12, v2")
    A("v_lshl_add_u32 v3, v1, 4, v3")
    A("v_add_u32 v4, s%d, v3" % sT0)
    for i in range(3):
        A("s_mov_b32 s48, 0x%x" % (i * 64 * 4096))
        A("buffer_load_dwordx4 v[%d:%d], v4, %s, s48 offen" % (24 + 4 * i, 27 + 4 * i, sr(sY, 4)))
    A("s_lshl_b32 s%d, s%d, 10" % (sT0, sB))
    A("s_lshl_b32 s%d, s%d, 5" % (sT1, sCS))
    A("s_add_u32 s%d, s%d, s%d" % (sT0, sT0, sT1))
    A("v_and_b32 v6, 15, v0")
    A("v_lshlrev_b32 v6, 1, v6")
    A("v_add_u32 v6, s%d, v6" % sT0)
    A("buffer_load_ushort v7, v6, %s, 0 offen" % sr(sX, 4))
    A("s_waitcnt vmcnt(4)")
    A("v_max3_f32 v36, v16, v18, v20")
    A("v_max_f32 v36, v36, v22")
    for c in range(4):
        A("v_sub_f32 v%d, v%d, v36" % (16 + 2 * c, 16 + 2 * c))
    for c in range(4):
        A("v_mul_f32 v%d, %s, v%d" % (16 + 2 * c, LOG2E, 16 + 2 * c))
    for c in range(4):
        A("v_exp_f32 v%d, v%d" % (16 + 2 * c, 16 + 2 * c))
    A("v_mul_f32 v36, v16, v17")
    A("v_fmac_f32 v36, v18, v19")
    A("v_fmac_f32 v36, v20, v21")
    A("v_fmac_f32 v36, v22, v23")
    A("v_rcp_f32 v37, v36")
    A("v_fma_f32 v38, -v36, v37, 1.0")
    A("v_fmac_f32 v37, v38, v37")
    A("v_cmp_gt_u32 vcc, 32, v2")
    A("v_cndmask_b32 v38, v18, v16, vcc")
    A("v_cndmask_b32 v39, v22, v20, vcc")
    A("v_mul_f32 v38, v38, v37")
    A("v_mul_f32 v39, v39, v37")
    for k in range(4):
        A("v_mul_f32 v%d, v38, v%d" % (8 + k, 8 + k))
    for k in range(4):
        A("v_fmac_f32 v%d, v39, v%d" % (8 + k, 12 + k))
    A("s_waitcnt vmcnt(1)")
    for k in range(4):
        A("v_add_f32 v%d, v%d, v%d" % (12 + k, 24 + k, 28 + k))
    for k in range(4):
        A("v_add_f32 v%d, v%d, v%d" % (12 + k, 12 + k, 32 + k))
    for k in range(8):
        A("v_add_f32_dpp v%d, v%d, v%d row_ror:4 %s" % (8 + k, 8 + k, 8 + k, DPPF))
    for k in range(8):
        A("v_add_f32_dpp v%d, v%d, v%d row_ror:8 %s" % (8 + k, 8 + k, 8 + k, DPPF))
    rows_merge8(A, [v(8 + i) for i in range(8)])
    A("v_and_b32 v16, 63, v0")
    A("v_lshrrev_b32 v17, 4, v16")
    A("v_and_b32 v18, 1, v17")
    A("v_lshlrev_b32 v18, 1, v18")
    A("v_lshrrev_b32 v17, 1, v17")
    A("v_or_b32 v18, v18, v17")
    A("v_lshl_add_u32 v18, v1, 2, v18")
    A("v_lshrrev_b32 v17, 6, v0")
    A("v_lshl_add_u32 v18, v17, 5, v18")
    A("v_lshlrev_b32 v18, 2, v18")
    A("ds_write_b32 v18, v8")
    A("ds_write_b32 v18, v12 offset:64")
    A("s_waitcnt lgkmcnt(0)")
    A("s_barrier")
    A("v_cmp_gt_u32 vcc, 16, v0")
    A("s_and_saveexec_b64 s[50:51], vcc")
    A("s_cbranch_execz K2_END")
    A("v_lshlrev_b32 v18, 2, v0")
    for w in range(4):
        A("ds_read_b32 v%d, v18 offset:%d" % (20 + w, 128 * w))
        A("ds_read_b32 v%d, v18 offset:%d" % (24 + w, 128 * w + 64))
    A("s_waitcnt lgkmcnt(0)")
    A("v_add_f32 v20, v20, v21")
    A("v_add_f32 v22, v22, v23")
    A("v_add_f32 v24, v24, v25")
    A("v_add_f32 v26, v26, v27")
    A("v_add_f32 v20, v20, v22")
    A("v_add_f32 v24, v24, v26")
    rne2(A, "v20", "v24", "v21")
    A("v_mul_f32 v25, 0xbfb8aa3b, v24")
    A("v_exp_f32 v25, v25")
    A("v_add_f32 v25, 1.0, v25")
    A("v_rcp_f32 v26, v25")
    A("v_mul_f32 v27, v24, v26")
    A("v_fma_f32 v28, -v27, v25, v24")
    A("v_fmac_f32 v27, v28, v26")
    rne1(A, "v27", "v21")
    A("v_mul_f32 v20, v20, v27")
    rne1(A, "v20", "v21")
    A("s_waitcnt vmcnt(0)")
    A("v_lshlrev_b32 v7, 16, v7")
    A("v_add_f32 v20, v20, v7")
    A("v_cvt_pk_bf16_f32 v20, v20, v20")
    A("buffer_store_short v20, v6, %s, 0 offen" % sr(sO, 4))
    A.label("K2_END")
    A("s_endpgm")
    return A.text()


def kd(name, vg, sg):
    return """.amdhsa_kernel %s
  .amdhsa_next_free_vgpr %d
  .amdhsa_next_free_sgpr %d
  .amdhsa_accum_offset %d
  .amdhsa_group_segment_fixed_size 0
  .amdhsa_kernarg_size 96
  .amdhsa_user_sgpr_count 2
  .amdhsa_user_sgpr_kernarg_segment_ptr 1
  .amdhsa_system_sgpr_workgroup_id_x 1
.end_amdhsa_kernel
""" % (name, vg, sg, (vg + 3) // 4 * 4)


def main():
    out = sys.argv[1]
    k1 = NAME + "_kernel"
    k2 = "combine_kernel"
    hdr = open("cdna_kernels/%s.s.ref" % NAME).read().split("; Override launch")[0]
    s = hdr
    s += "; @launch kernel=%s grid=(256,1,1) block=(1024,1,1) lds=%d\n" % (k1, L_TOTAL)
    s += "; @launch kernel=%s grid=(64,1,1) block=(256,1,1) lds=512\n" % k2
    s += '.amdgcn_target "amdgcn-amd-amdhsa--gfx950"\n.text\n'
    for nm, body in ((k1, gen_k1()), (k2, gen_k2())):
        s += ".globl %s\n.p2align 8\n.type %s,@function\n%s:\n" % (nm, nm, nm)
        s += body
    s += '.section .rodata,"a"\n.p2align 6\n'
    s += kd(k1, 128, 102)
    s += ".p2align 6\n"
    s += kd(k2, 40, 56)
    open(out, "w").write(s)


main()
```

```python
import sys
import os
sys.path.insert(0, os.path.dirname(os.path.abspath(__file__)))
from asmlib import Asm

NAME = "recurrent_scan__gqa_block_cached__geglu_ffn__decode"

CFG = dict(D=12, NT=1, INTERLEAVE=False, STAMP=0, PB=0, LB=0, NOFFN=0, NOWQ=0, NOWO=0, CPF=0, E=12, ROT=1, NOCOMP=0, EWO=1, PRIO=0, WNT=0, RA=1, RB=3, KNT=1, VNT=1, TW=0, RG=0)
for a in sys.argv[2:]:
    k, v = a.split("=")
    CFG[k] = int(v)
D = CFG["D"]
NT = ["", " nt", " sc1 nt", " sc0 sc1 nt", " sc0 sc1", " sc1", " sc0 nt"][CFG["NT"]]
INTERLEAVE = CFG["INTERLEAVE"]
WNT = " nt" if CFG["WNT"] else ""
STAMP = CFG["STAMP"]
PB = CFG["PB"]
LB = CFG["LB"]

LOG2E = "0x3fb8aa3b"
SCALE = "0x3db504f3"
HI = "0xffff0000"

WS_T = 0
WS_ML = 512 * 1024
WS_Y = 1024 * 1024
NFFN = 172

L_XN = 0
L_QP = 4096
L_QB = 12288
L_FP = 12544
L_ML = 13568
L_OP = 13824
L_TP = 22528
L_TOTAL = 55296


def v(n):
    return "v%d" % n


def vr(n, c):
    return "v[%d:%d]" % (n, n + c - 1)


def sr(n, c):
    return "s[%d:%d]" % (n, n + c - 1)


def srd(A, dst, ptr, nbytes):
    A("s_mov_b32 s%d, s%d" % (dst, ptr))
    A("s_and_b32 s%d, s%d, 0xffff" % (dst + 1, ptr + 1))
    if isinstance(nbytes, str):
        A("s_mov_b32 s%d, %s" % (dst + 2, nbytes))
    else:
        A("s_mov_b32 s%d, 0x%x" % (dst + 2, nbytes))
    A("s_mov_b32 s%d, 0x00020000" % (dst + 3))


DPPF = "row_mask:0xf bank_mask:0xf"


def row_allreduce(A, op, x):
    A("%s_dpp %s, %s, %s quad_perm:[1,0,3,2] %s" % (op, x, x, x, DPPF))
    A("%s_dpp %s, %s, %s quad_perm:[2,3,0,1] %s" % (op, x, x, x, DPPF))
    A("%s_dpp %s, %s, %s row_half_mirror %s" % (op, x, x, x, DPPF))
    A("%s_dpp %s, %s, %s row_mirror %s" % (op, x, x, x, DPPF))


def xrow_allreduce(A, op, x, t):
    A("v_mov_b32 %s, %s" % (t, x))
    A("v_permlane16_swap_b32 %s, %s" % (x, t))
    A("%s %s, %s, %s" % (op, x, x, t))
    A("v_mov_b32 %s, %s" % (t, x))
    A("v_permlane32_swap_b32 %s, %s" % (x, t))
    A("%s %s, %s, %s" % (op, x, x, t))


def rows_merge8(A, a):
    for i in range(0, 8, 2):
        A("v_permlane32_swap_b32 %s, %s" % (a[i], a[i + 1]))
    for i in range(0, 8, 2):
        A("v_add_f32 %s, %s, %s" % (a[i], a[i], a[i + 1]))
    A("v_permlane16_swap_b32 %s, %s" % (a[0], a[2]))
    A("v_permlane16_swap_b32 %s, %s" % (a[4], a[6]))
    A("v_add_f32 %s, %s, %s" % (a[0], a[0], a[2]))
    A("v_add_f32 %s, %s, %s" % (a[4], a[4], a[6]))


def rne2(A, a, b, t):
    A("v_cvt_pk_bf16_f32 %s, %s, %s" % (t, a, b))
    A("v_lshlrev_b32 %s, 16, %s" % (a, t))
    A("v_and_b32 %s, %s, %s" % (b, HI, t))


def rne1(A, a, t):
    A("v_cvt_pk_bf16_f32 %s, %s, %s" % (t, a, a))
    A("v_lshlrev_b32 %s, 16, %s" % (a, t))


def layernorm(A, X, vaddr, off):
    f = [v(32 + i) for i in range(8)]
    S, T, MEAN, R = "v40", "v41", "v42", "v43"
    for k in range(4):
        A("v_lshlrev_b32 %s, 16, v%d" % (f[2 * k], X + k))
        A("v_and_b32 %s, %s, v%d" % (f[2 * k + 1], HI, X + k))
    A("v_add_f32 %s, %s, %s" % (S, f[0], f[1]))
    A("v_add_f32 %s, %s, %s" % (T, f[2], f[3]))
    A("v_add_f32 %s, %s, %s" % (R, f[4], f[5]))
    A("v_add_f32 %s, %s, %s" % (MEAN, f[6], f[7]))
    A("v_add_f32 %s, %s, %s" % (S, S, T))
    A("v_add_f32 %s, %s, %s" % (R, R, MEAN))
    A("v_add_f32 %s, %s, %s" % (S, S, R))
    row_allreduce(A, "v_add_f32", S)
    xrow_allreduce(A, "v_add_f32", S, T)
    A("v_mul_f32 %s, 0x3b000000, %s" % (MEAN, S))
    for k in range(8):
        A("v_sub_f32 %s, %s, %s" % (R, f[k], MEAN))
        if k == 0:
            A("v_mul_f32 %s, %s, %s" % (S, R, R))
        else:
            A("v_fmac_f32 %s, %s, %s" % (S, R, R))
    row_allreduce(A, "v_add_f32", S)
    xrow_allreduce(A, "v_add_f32", S, T)
    A("v_mul_f32 %s, 0x3b000000, %s" % (S, S))
    rne2(A, MEAN, S, T)
    A("v_add_f32 %s, 0x3727c5ac, %s" % (S, S))
    rne1(A, S, T)
    A("v_sqrt_f32 %s, %s" % (S, S))
    rne1(A, S, T)
    A("v_rcp_f32 %s, %s" % (R, S))
    Q0, Q1 = "v44", "v45"
    for k in range(0, 8, 2):
        A("v_sub_f32 %s, %s, %s" % (f[k], f[k], MEAN))
        A("v_sub_f32 %s, %s, %s" % (f[k + 1], f[k + 1], MEAN))
        rne2(A, f[k], f[k + 1], T)
        A("v_mul_f32 %s, %s, %s" % (Q0, f[k], R))
        A("v_mul_f32 %s, %s, %s" % (Q1, f[k + 1], R))
        A("v_fma_f32 %s, -%s, %s, %s" % (f[k], Q0, S, f[k]))
        A("v_fma_f32 %s, -%s, %s, %s" % (f[k + 1], Q1, S, f[k + 1]))
        A("v_fma_f32 %s, %s, %s, %s" % (f[k], f[k], R, Q0))
        A("v_fma_f32 %s, %s, %s, %s" % (f[k + 1], f[k + 1], R, Q1))
        rne2(A, f[k], f[k + 1], T)
    A("ds_write_b128 %s, v[32:35] offset:%d" % (vaddr, off))
    A("ds_write_b128 %s, v[36:39] offset:%d" % (vaddr, off + 16))


def gen_k1():
    A = Asm()
    sK, sV, sWQ, sWO, sX, sF, sWD, sWS = 28, 32, 36, 40, 44, 48, 52, 56
    sWAVE, sH, sB, sC, sJ, sJV, sT0, sT1 = 60, 61, 62, 63, 64, 65, 66, 67
    sHH, sHL = 68, 84
    sOFF = 100
    sROT = 101
    vTID, vLANE, vKV, vA = "v0", "v1", "v2", "v3"
    Q = 4
    ACC = 8
    PL, PH = 16, 24
    AA = 32
    vC, vD = "v36", "v37"
    vDI = "v46"
    vG = "v47"
    WQ = 48
    RING = 80
    assert RING + 4 * D <= 128

    A("s_cmp_ge_u32 s2, 256")
    A("s_cbranch_scc1 K1_END")
    A("s_load_dwordx16 s[4:19], s[0:1], 0")
    A("s_load_dwordx8 s[20:27], s[0:1], 64")
    if CFG["CPF"]:
        A("s_getpc_b64 s[28:29]")
        A("v_lshlrev_b32 v1, 4, v0")
        A("global_load_dwordx4 v[124:127], v1, s[28:29]")
    A("v_and_b32 %s, 63, %s" % (vLANE, vTID))
    A("v_lshrrev_b32 v3, 6, %s" % vTID)
    A("v_readfirstlane_b32 s%d, v3" % sWAVE)
    A("s_and_b32 s%d, s2, 31" % sH)
    A("s_lshr_b32 s%d, s2, 7" % sB)
    A("s_bfe_u32 s%d, s2, 0x20005" % sC)
    A("s_and_b32 s%d, s2, 0xc0" % sJ)
    A("s_and_b32 s%d, s2, 7" % sT0)
    A("s_lshl_b32 s%d, s%d, 3" % (sT0, sT0))
    A("s_add_u32 s%d, s%d, s%d" % (sJ, sJ, sT0))
    A("s_bfe_u32 s%d, s2, 0x30003" % sT0)
    A("s_add_u32 s%d, s%d, s%d" % (sJ, sJ, sT0))
    A("s_cmp_lt_u32 s%d, %d" % (sJ, NFFN))
    A("s_cselect_b32 s%d, %d, 0" % (sJV, 0 if CFG["NOFFN"] else 1))
    A("v_lshrrev_b32 %s, 4, %s" % (vG, vLANE))
    A("v_and_b32 v38, 1, %s" % vG)
    A("v_lshlrev_b32 v38, 1, v38")
    A("v_lshrrev_b32 v39, 1, %s" % vG)
    A("v_or_b32 v38, v38, v39")
    A("v_and_b32 v39, 15, %s" % vLANE)
    A("v_lshl_add_u32 %s, v39, 3, v38" % vDI)
    A("s_waitcnt lgkmcnt(0)")
    srd(A, sX, 4, 2048)
    srd(A, sK, 6, 0x8000000)
    srd(A, sV, 8, 0x8000000)
    srd(A, sWQ, 10, 0 if CFG["NOWQ"] else 0x400000)
    srd(A, sWO, 12, 0 if CFG["NOWO"] else 0x400000)
    srd(A, sWD, 20, 1376 * 1024)
    srd(A, sWS, 26, 0x200000)
    A("s_cmp_lt_u32 s%d, 8" % sWAVE)
    A("s_cselect_b32 s%d, s16, s18" % sF)
    A("s_cselect_b32 s%d, s17, s19" % (sF + 1))
    A("s_and_b32 s%d, s%d, 0xffff" % (sF + 1, sF + 1))
    A("s_cmp_eq_u32 s%d, 1" % sJV)
    A("s_cselect_b32 s%d, 0x%x, 0" % (sF + 2, 512 * 2752))
    A("s_mov_b32 s%d, 0x00020000" % (sF + 3))

    nst = [0]
    def stamp(level=1):
        if (STAMP == 1 and level == 1) or (STAMP == 2 and level in (0, 2)) or (STAMP and level == 0) or (STAMP == 3 and level == 3):
            A("s_memrealtime s[%d:%d]" % (4 + 2 * nst[0], 5 + 2 * nst[0]))
            nst[0] += 1
    stamp(0)
    A("v_lshlrev_b32 %s, 4, %s" % (vA, vLANE))
    A("buffer_load_dwordx4 v[8:11], %s, %s, 0 offen" % (vA, sr(sX, 4)))
    A("buffer_load_dwordx4 v[12:15], %s, %s, 0 offen offset:1024" % (vA, sr(sX, 4)))
    if STAMP == 3:
        A("s_waitcnt vmcnt(0)")
        stamp(3)
    A("s_lshl_b32 s%d, s%d, 18" % (sT0, sWAVE))
    A("s_lshl_b32 s%d, s%d, 8" % (sT1, sH))
    A("s_add_u32 s%d, s%d, s%d" % (sT0, sT0, sT1))
    A("v_lshlrev_b32 v38, 13, %s" % vG)
    A("v_lshl_add_u32 v38, v39, 4, v38")
    A("v_add_u32 v38, s%d, v38" % sT0)
    for i in range(8):
        A("s_mov_b32 s%d, 0x%x" % (sOFF, i * 32768))
        A("buffer_load_dwordx4 %s, v38, %s, s%d offen%s" % (vr(WQ + 4 * i, 4), sr(sWQ, 4), sOFF, WNT))
    if STAMP == 3:
        A("s_waitcnt vmcnt(0)")
        stamp(3)
    A("s_and_b32 s%d, s%d, 7" % (sT0, sWAVE))
    A("s_lshl_b32 s%d, s%d, 6" % (sT0, sT0))
    A("v_add_u32 v38, s%d, %s" % (sT0, vLANE))
    A("s_movk_i32 s%d, 2752" % sT1)
    A("v_mul_lo_u32 v38, v38, s%d" % sT1)
    A("s_lshl_b32 s%d, s%d, 4" % (sT1, sJ))
    A("v_add_u32 v38, s%d, v38" % sT1)
    A("buffer_load_dwordx4 v[28:31], v38, %s, 0 offen%s" % (sr(sF, 4), WNT))
    if STAMP == 3:
        A("s_waitcnt vmcnt(0)")
        stamp(3)
    A("s_lshl_b32 s%d, s%d, 5" % (sT0, sB))
    A("s_add_u32 s%d, s%d, s%d" % (sT0, sT0, sH))
    A("s_lshl_b32 s%d, s%d, 21" % (sT0, sT0))
    A("s_lshl_b32 s%d, s%d, 19" % (sT1, sC))
    A("s_add_u32 s%d, s%d, s%d" % (sT0, sT0, sT1))
    if INTERLEAVE:
        A("s_lshl_b32 s%d, s%d, 10" % (sT1, sWAVE))
    else:
        A("s_lshl_b32 s%d, s%d, 15" % (sT1, sWAVE))
    A("s_add_u32 s%d, s%d, s%d" % (sT0, sT0, sT1))
    A("v_add_u32 %s, s%d, %s" % (vKV, sT0, vA))
    A("s_mul_i32 s%d, s%d, %d" % (sROT, sWAVE, CFG["RB"]))
    A("s_mul_i32 s%d, s2, %d" % (sT1, CFG["RA"]))
    A("s_add_u32 s%d, s%d, s%d" % (sROT, sROT, sT1))
    if CFG["RG"]:
        A("s_lshl_b32 s%d, s%d, %d" % (sROT, sROT, CFG["RG"]))
    A("s_and_b32 s%d, s%d, 31" % (sROT, sROT))
    A("s_lshl_b32 s%d, s%d, %d" % (sROT, sROT, 14 if INTERLEAVE else 10))

    def issue(n):
        if n < 64:
            i = n & 31
            srdn = sK if n < 32 else sV
            dst = RING + 4 * (n % D)
            if INTERLEAVE:
                so, io = i * 16384, 0
            else:
                so, io = (i >> 2) * 4096, (i & 3) * 1024
            if CFG["ROT"]:
                A("buffer_load_dwordx4 %s, %s, %s, s%d offen%s" % (vr(dst, 4), vKV, sr(srdn, 4), sROT, (NT if CFG["KNT" if n < 32 else "VNT"] else "")))
                if INTERLEAVE:
                    A("s_add_u32 s%d, s%d, 0x4000" % (sROT, sROT))
                    A("s_and_b32 s%d, s%d, 0x7ffff" % (sROT, sROT))
                else:
                    A("s_add_u32 s%d, s%d, 0x400" % (sROT, sROT))
                    A("s_and_b32 s%d, s%d, 0x7fff" % (sROT, sROT))
            else:
                A("s_mov_b32 s%d, 0x%x" % (sOFF, so))
                A("buffer_load_dwordx4 %s, %s, %s, s%d offen offset:%d%s" % (vr(dst, 4), vKV, sr(srdn, 4), sOFF, io, NT))
        else:
            r = n - 64
            if r == 0:
                A("s_lshl_b32 s%d, s%d, 17" % (sT0, sH))
                A("s_lshl_b32 s%d, s%d, 13" % (sT1, sWAVE))
                A("s_add_u32 s%d, s%d, s%d" % (sT0, sT0, sT1))
                A("v_lshlrev_b32 %s, 4, %s" % (vA, vLANE))
                A("v_add_u32 %s, s%d, %s" % (vA, sT0, vA))
            A("s_mov_b32 s%d, 0x%x" % (sOFF, (r >> 2) * 4096))
            A("buffer_load_dwordx4 %s, %s, %s, s%d offen offset:%d%s" % (vr(WQ + 4 * r, 4), vA, sr(sWO, 4), sOFF, (r & 3) * 1024, WNT))

    E = min(CFG["E"], D)
    TW = CFG["TW"]
    if TW:
        A("buffer_load_dword v16, %s, %s, 0 offen nt" % (vKV, sr(sV, 4)))
        A("s_lshl_b32 s%d, s2, 11" % sT0)
        A("v_mov_b32 v17, s%d" % sT0)
        A("buffer_load_dword v17, v17, %s, 0 offen" % sr(sWS, 4))
        A("s_lshl_b32 s%d, s%d, 17" % (sT0, sH))
        A("v_mov_b32 v18, s%d" % sT0)
        A("buffer_load_dword v18, v18, %s, 0 offen" % sr(sWO, 4))
    if PB:
        A("s_barrier")
    for n in range(E):
        issue(n)
    EWO = CFG["EWO"]
    NTOT = 64 if EWO else 72
    if STAMP == 3:
        A("s_waitcnt vmcnt(0)")
        stamp(3)

    A("s_waitcnt vmcnt(%d)" % (E + 1 + 8 + 3 * TW))
    stamp(2)
    A("v_lshlrev_b32 v3, 5, %s" % vLANE)
    layernorm(A, 8, "v3", L_XN)
    layernorm(A, 12, "v3", L_XN + 2048)
    A("s_waitcnt lgkmcnt(0)")

    stamp(2)
    A("s_and_b32 s%d, s%d, 7" % (sT0, sWAVE))
    A("s_lshl_b32 s%d, s%d, 8" % (sT0, sT0))
    A("v_lshlrev_b32 v3, 2, %s" % vLANE)
    A("v_add_u32 v3, s%d, v3" % sT0)
    A("ds_read_b32 v8, v3 offset:%d" % (L_XN))
    A("ds_read_b32 v9, v3 offset:%d" % (L_XN + 2048))
    A("s_waitcnt lgkmcnt(0)")
    A("v_lshrrev_b32 v10, 16, v8")
    A("v_lshrrev_b32 v11, 16, v9")
    A("s_waitcnt vmcnt(%d)" % E)
    FA = [v(12 + i) for i in range(16)]
    for b in range(2):
        for k in range(4):
            A("v_dot2_f32_bf16 %s, v%d, v%d, 0" % (FA[b * 8 + 2 * k], 28 + k, 10 + b))
            A("v_dot2_f32_bf16 %s, v%d, v%d, 0" % (FA[b * 8 + 2 * k + 1], 28 + k, 8 + b))
    for i in range(0, 16, 2):
        A("v_permlane32_swap_b32 %s, %s" % (FA[i], FA[i + 1]))
    for i in range(0, 16, 2):
        A("v_add_f32 %s, %s, %s" % (FA[i], FA[i], FA[i + 1]))
    for i in range(0, 16, 4):
        A("v_permlane16_swap_b32 %s, %s" % (FA[i], FA[i + 2]))
    for i in range(0, 16, 4):
        A("v_add_f32 %s, %s, %s" % (FA[i], FA[i], FA[i + 2]))
    S = [FA[0], FA[4], FA[8], FA[12]]
    U0, U1, Z = "v32", "v33", "v34"
    A("v_add_f32_dpp %s, %s, %s row_ror:8 row_mask:0xf bank_mask:0x3" % (U0, S[0], S[0]))
    A("v_add_f32_dpp %s, %s, %s row_ror:8 row_mask:0xf bank_mask:0xc" % (U0, S[1], S[1]))
    A("v_add_f32_dpp %s, %s, %s row_ror:8 row_mask:0xf bank_mask:0x3" % (U1, S[2], S[2]))
    A("v_add_f32_dpp %s, %s, %s row_ror:8 row_mask:0xf bank_mask:0xc" % (U1, S[3], S[3]))
    A("v_add_f32_dpp %s, %s, %s row_half_mirror row_mask:0xf bank_mask:0x5" % (Z, U0, U0))
    A("v_add_f32_dpp %s, %s, %s row_half_mirror row_mask:0xf bank_mask:0xa" % (Z, U1, U1))
    A("v_add_f32_dpp %s, %s, %s quad_perm:[1,0,3,2] %s" % (Z, Z, Z, DPPF))
    A("v_add_f32_dpp %s, %s, %s quad_perm:[2,3,0,1] %s" % (Z, Z, Z, DPPF))
    A("v_bfe_u32 v35, %s, 2, 1" % vLANE)
    A("v_bfe_u32 v38, %s, 3, 1" % vLANE)
    A("v_lshl_add_u32 v35, v35, 1, v38")
    A("v_and_b32 v38, 7, %s" % vDI)
    A("v_lshl_add_u32 v35, v35, 2, v38")
    A("s_lshl_b32 s%d, s%d, 6" % (sT0, sWAVE))
    A("v_lshlrev_b32 v35, 2, v35")
    A("v_add_u32 v35, s%d, v35" % sT0)
    A("ds_write_b32 v35, %s offset:%d" % (Z, L_FP))

    stamp(2)
    A("s_lshl_b32 s%d, s%d, 11" % (sT0, sB))
    A("s_lshl_b32 s%d, s%d, 7" % (sT1, sWAVE))
    A("s_add_u32 s%d, s%d, s%d" % (sT0, sT0, sT1))
    A("v_lshlrev_b32 v3, 2, %s" % vG)
    A("v_add_u32 v3, s%d, v3" % sT0)
    for i in range(8):
        A("ds_read_b32 v%d, v3 offset:%d" % (16 + i, L_XN + 16 * i))
    A("s_waitcnt lgkmcnt(0)")
    for i in range(8):
        A("v_lshrrev_b32 v%d, 16, v%d" % (24 + i, 16 + i))
    qa = [v(8 + i) for i in range(8)]
    for i in range(8):
        for k in range(4):
            c0 = "0" if i == 0 else qa[2 * k]
            c1 = "0" if i == 0 else qa[2 * k + 1]
            A("v_dot2_f32_bf16 %s, v%d, v%d, %s" % (qa[2 * k], WQ + 4 * i + k, 24 + i, c0))
            A("v_dot2_f32_bf16 %s, v%d, v%d, %s" % (qa[2 * k + 1], WQ + 4 * i + k, 16 + i, c1))
    rows_merge8(A, qa)
    A("s_lshl_b32 s%d, s%d, 9" % (sT0, sWAVE))
    A("v_lshlrev_b32 v3, 2, %s" % vDI)
    A("v_add_u32 v3, s%d, v3" % sT0)
    A("v_add_u32 v3, 0x%x, v3" % L_QP)
    A("ds_write2_b32 v3, %s, %s offset0:0 offset1:4" % (qa[0], qa[4]))
    A("s_waitcnt lgkmcnt(0)")
    A("s_barrier")
    stamp(2)
    A("v_and_b32 v38, 7, %s" % vLANE)
    A("v_lshrrev_b32 v39, 3, %s" % vLANE)
    A("v_lshlrev_b32 v3, 9, v39")
    A("v_lshl_add_u32 v3, v38, 2, v3")
    A("s_lshl_b32 s%d, s%d, 5" % (sT0, sWAVE))
    A("v_add_u32 v3, s%d, v3" % sT0)
    A("ds_read_b32 v8, v3 offset:%d" % L_QP)
    A("ds_read_b32 v9, v3 offset:%d" % (L_QP + 4096))
    A("s_waitcnt lgkmcnt(0)")
    A("v_add_f32 v8, v8, v9")
    A("v_add_f32_dpp v8, v8, v8 row_ror:8 %s" % DPPF)
    xrow_allreduce(A, "v_add_f32", "v8", "v9")
    A("v_cvt_pk_bf16_f32 v8, v8, v8")
    A("s_lshl_b32 s%d, s%d, 4" % (sT0, sWAVE))
    A("v_lshlrev_b32 v3, 1, v38")
    A("v_add_u32 v3, s%d, v3" % sT0)
    A("ds_write_b16 v3, v8 offset:%d" % L_QB)
    A("s_waitcnt lgkmcnt(0)")
    A("s_barrier")
    A("v_and_b32 v3, 15, %s" % vLANE)
    A("v_lshlrev_b32 v3, 4, v3")
    A("ds_read_b128 %s, v3 offset:%d" % (vr(Q, 4), L_QB))
    for n in range(E, D):
        issue(n)

    A("s_cmp_lg_u32 s%d, 0" % sWAVE)
    A("s_cbranch_scc1 K1_NOFFN")
    A("s_cmp_lg_u32 s%d, 1" % sJV)
    A("s_cbranch_scc1 K1_NOFFN")
    A("s_lshl_b32 s%d, s%d, 13" % (sT0, sJ))
    A("v_lshlrev_b32 v3, 4, %s" % vLANE)
    A("v_add_u32 v3, s%d, v3" % sT0)
    for f in range(8):
        A("s_mov_b32 s%d, 0x%x" % (sOFF, (f >> 2) * 4096))
        A("buffer_load_dwordx4 %s, v3, %s, s%d offen offset:%d%s" % (vr(WQ + 4 * f, 4), sr(sWD, 4), sOFF, (f & 3) * 1024, WNT))
    A("v_lshlrev_b32 v38, 2, %s" % vLANE)
    A("ds_read_b32 v8, v38 offset:%d" % (L_FP))
    A("ds_read_b32 v9, v38 offset:%d" % (L_FP + 256))
    A("ds_read_b32 v10, v38 offset:%d" % (L_FP + 512))
    A("ds_read_b32 v11, v38 offset:%d" % (L_FP + 768))
    A("s_waitcnt lgkmcnt(0)")
    A("v_add_f32 v8, v8, v9")
    A("v_add_f32 v10, v10, v11")
    xrow_allreduce(A, "v_add_f32", "v8", "v9")
    xrow_allreduce(A, "v_add_f32", "v10", "v11")
    rne2(A, "v8", "v10", "v9")
    A("v_mul_f32 v9, v8, v8")
    A("v_mov_b32 v11, 0x3f4c422a")
    A("v_fmac_f32 v11, 0x3d12220c, v9")
    A("v_mul_f32 v11, v11, v8")
    A("v_mul_f32 v11, 0xc038aa3b, v11")
    A("v_exp_f32 v11, v11")
    A("v_add_f32 v11, 1.0, v11")
    A("v_rcp_f32 v11, v11")
    A("v_mul_f32 v8, v8, v11")
    rne1(A, "v8", "v9")
    A("v_mul_f32 v8, v8, v10")
    rne1(A, "v8", "v9")
    for i in range(16):
        A("v_readlane_b32 s%d, v8, %d" % (sHH + i, i))
    for i in range(16):
        A("s_lshr_b32 s%d, s%d, 16" % (sHL + i, sHH + i))
    A("s_waitcnt vmcnt(0)")
    YA = [v(8 + i) for i in range(16)]
    for f in range(8):
        for k in range(4):
            for b in range(2):
                c0 = "0" if f == 0 else YA[b * 8 + 2 * k]
                c1 = "0" if f == 0 else YA[b * 8 + 2 * k + 1]
                A("v_dot2_f32_bf16 %s, v%d, s%d, %s" % (YA[b * 8 + 2 * k], WQ + 4 * f + k, sHL + b * 8 + f, c0))
                A("v_dot2_f32_bf16 %s, v%d, s%d, %s" % (YA[b * 8 + 2 * k + 1], WQ + 4 * f + k, sHH + b * 8 + f, c1))
    A("s_lshl_b32 s%d, s%d, 12" % (sT0, sJ))
    A("s_add_u32 s%d, s%d, 0x%x" % (sT0, sT0, WS_Y))
    A("v_lshlrev_b32 v3, 5, %s" % vLANE)
    A("v_add_u32 v3, s%d, v3" % sT0)
    A("buffer_store_dwordx4 v[8:11], v3, %s, 0 offen" % sr(sWS, 4))
    A("buffer_store_dwordx4 v[12:15], v3, %s, 0 offen offset:16" % sr(sWS, 4))
    A("buffer_store_dwordx4 v[16:19], v3, %s, 0 offen offset:2048" % sr(sWS, 4))
    A("buffer_store_dwordx4 v[20:23], v3, %s, 0 offen offset:2064" % sr(sWS, 4))
    A.label("K1_NOFFN")
    if EWO:
        for m in range(64, 72):
            issue(m)
    A("s_waitcnt lgkmcnt(0)")
    stamp()

    def waitfor(n):
        if CFG["PRIO"] == 1 and n % 16 == 0:
            A("s_setprio %d" % (3 - n // 16))
        if CFG["PRIO"] == 2 and n in (0, 40, 52, 60):
            A("s_setprio %d" % {0: 3, 40: 2, 52: 1, 60: 0}[n])
        if CFG["PRIO"] == 3 and n in (0, 8, 16, 24):
            A("s_setprio %d" % {0: 3, 8: 2, 16: 1, 24: 0}[n])
        outstanding_after = min(n + D - 1, NTOT - 1) - n
        if EWO and n < D:
            outstanding_after += 8
        A("s_waitcnt vmcnt(%d)" % outstanding_after)

    a = [v(AA + i) for i in range(4)]
    for I in range(8):
        for t in range(4):
            n = 4 * I + t
            if LB and n % LB == 0 and n > 0:
                A("s_barrier")
            waitfor(n)
            base = RING + 4 * (n % D)
            for k in range(4 if not CFG["NOCOMP"] else 1):
                c = "0" if k == 0 else a[t]
                A("v_dot2_f32_bf16 %s, v%d, v%d, %s" % (a[t], base + k, Q + k, c))
            if n + D < NTOT:
                issue(n + D)
        for t in range(4):
            A("v_add_f32_dpp %s, %s, %s quad_perm:[1,0,3,2] %s" % (a[t], a[t], a[t], DPPF))
        for t in range(4):
            A("v_add_f32_dpp %s, %s, %s quad_perm:[2,3,0,1] %s" % (a[t], a[t], a[t], DPPF))
        A("v_add_f32_dpp %s, %s, %s row_half_mirror row_mask:0xf bank_mask:0x5" % (vC, a[0], a[0]))
        A("v_add_f32_dpp %s, %s, %s row_half_mirror row_mask:0xf bank_mask:0xa" % (vC, a[1], a[1]))
        A("v_add_f32_dpp %s, %s, %s row_half_mirror row_mask:0xf bank_mask:0x5" % (vD, a[2], a[2]))
        A("v_add_f32_dpp %s, %s, %s row_half_mirror row_mask:0xf bank_mask:0xa" % (vD, a[3], a[3]))
        A("v_add_f32_dpp v%d, %s, %s row_ror:8 row_mask:0xf bank_mask:0x3" % (PL + I, vC, vC))
        A("v_add_f32_dpp v%d, %s, %s row_ror:8 row_mask:0xf bank_mask:0xc" % (PL + I, vD, vD))

    stamp()
    M = [v(PL + i) for i in range(8)]
    T = "v38"
    for i in range(0, 8, 2):
        rne2(A, M[i], M[i + 1], T)
        A("v_mul_f32 %s, %s, %s" % (M[i], SCALE, M[i]))
        A("v_mul_f32 %s, %s, %s" % (M[i + 1], SCALE, M[i + 1]))
        rne2(A, M[i], M[i + 1], T)
    vM, vL = "v40", "v41"
    A("v_max3_f32 %s, %s, %s, %s" % (vM, M[0], M[1], M[2]))
    A("v_max3_f32 %s, %s, %s, %s" % (vM, vM, M[3], M[4]))
    A("v_max3_f32 %s, %s, %s, %s" % (vM, vM, M[5], M[6]))
    A("v_max_f32 %s, %s, %s" % (vM, vM, M[7]))
    A("v_max_f32_dpp %s, %s, %s row_ror:4 %s" % (vM, vM, vM, DPPF))
    A("v_max_f32_dpp %s, %s, %s row_ror:8 %s" % (vM, vM, vM, DPPF))
    xrow_allreduce(A, "v_max_f32", vM, T)
    A("v_mul_f32 v39, %s, %s" % (LOG2E, vM))
    A("s_mov_b32 s%d, %s" % (sT0, LOG2E))
    for i in range(8):
        A("v_fma_f32 %s, %s, s%d, -v39" % (M[i], M[i], sT0))
    for i in range(8):
        A("v_exp_f32 %s, %s" % (M[i], M[i]))
    A("v_add_f32 %s, %s, %s" % (vL, M[0], M[1]))
    A("v_add_f32 %s, %s, %s" % (T, M[2], M[3]))
    A("v_add_f32 v39, %s, %s" % (M[4], M[5]))
    A("v_add_f32 v42, %s, %s" % (M[6], M[7]))
    A("v_add_f32 %s, %s, %s" % (vL, vL, T))
    A("v_add_f32 v39, v39, v42")
    A("v_add_f32 %s, %s, v39" % (vL, vL))
    A("v_add_f32_dpp %s, %s, %s row_ror:4 %s" % (vL, vL, vL, DPPF))
    A("v_add_f32_dpp %s, %s, %s row_ror:8 %s" % (vL, vL, vL, DPPF))
    xrow_allreduce(A, "v_add_f32", vL, T)
    for i in range(0, 8, 2):
        A("v_cvt_pk_bf16_f32 %s, %s, %s" % (T, M[i], M[i + 1]))
        A("v_lshlrev_b32 v%d, 16, %s" % (PH + i, T))
        A("v_and_b32 v%d, %s, %s" % (PH + i + 1, HI, T))
        A("v_and_b32 v%d, 0xffff, %s" % (PL + i, T))
        A("v_lshrrev_b32 v%d, 16, %s" % (PL + i + 1, T))
    acc = [v(ACC + i) for i in range(8)]
    for i in range(8):
        A("v_mov_b32 %s, 0" % acc[i])

    for i in range(32):
        n = 32 + i
        I, qd = i >> 2, i & 3
        if LB and n % LB == 0:
            A("s_barrier")
        waitfor(n)
        base = RING + 4 * (n % D)
        for k in range(4 if not CFG["NOCOMP"] else 0):
            A("v_dot2c_f32_bf16_dpp %s, v%d, v%d row_newbcast:%d %s" % (acc[2 * k], PL + I, base + k, 4 * qd, DPPF))
            A("v_dot2c_f32_bf16_dpp %s, v%d, v%d row_newbcast:%d %s" % (acc[2 * k + 1], PH + I, base + k, 4 * qd, DPPF))
        if n + D < NTOT:
            issue(n + D)

    for m in range(64 + D, NTOT):
        issue(m)
    stamp()
    rows_merge8(A, acc)
    A("s_lshl_b32 s%d, s%d, 9" % (sT0, sWAVE))
    A("v_lshlrev_b32 v3, 2, %s" % vDI)
    A("v_add_u32 v3, s%d, v3" % sT0)
    A("v_add_u32 v3, 0x%x, v3" % L_OP)
    A("ds_write2_b32 v3, %s, %s offset0:0 offset1:4" % (acc[0], acc[4]))
    A("s_lshl_b32 s%d, s%d, 3" % (sT0, sWAVE))
    A("v_mov_b32 v3, s%d" % sT0)
    A("ds_write_b64 v3, v[40:41] offset:%d" % L_ML)
    A("s_waitcnt lgkmcnt(0)")
    A("s_barrier")
    A("v_and_b32 v38, 7, %s" % vLANE)
    A("v_lshrrev_b32 v39, 3, %s" % vLANE)
    A("v_lshlrev_b32 v3, 3, v39")
    A("ds_read_b64 v[16:17], v3 offset:%d" % L_ML)
    A("ds_read_b64 v[18:19], v3 offset:%d" % (L_ML + 64))
    A("v_lshlrev_b32 v3, 9, v39")
    A("v_lshl_add_u32 v3, v38, 2, v3")
    A("s_lshl_b32 s%d, s%d, 5" % (sT0, sWAVE))
    A("v_add_u32 v3, s%d, v3" % sT0)
    A("ds_read_b32 v20, v3 offset:%d" % L_OP)
    A("ds_read_b32 v21, v3 offset:%d" % (L_OP + 4096))
    A("s_waitcnt lgkmcnt(0)")
    A("v_max_f32 v22, v16, v18")
    A("v_max_f32_dpp v22, v22, v22 row_ror:8 %s" % DPPF)
    xrow_allreduce(A, "v_max_f32", "v22", "v23")
    A("v_sub_f32 v16, v16, v22")
    A("v_sub_f32 v18, v18, v22")
    A("v_mul_f32 v16, %s, v16" % LOG2E)
    A("v_mul_f32 v18, %s, v18" % LOG2E)
    A("v_exp_f32 v16, v16")
    A("v_exp_f32 v18, v18")
    A("v_mul_f32 v24, v16, v20")
    A("v_mul_f32 v23, v16, v17")
    A("v_fmac_f32 v24, v18, v21")
    A("v_fmac_f32 v23, v18, v19")
    A("v_add_f32_dpp v24, v24, v24 row_ror:8 %s" % DPPF)
    A("v_add_f32_dpp v23, v23, v23 row_ror:8 %s" % DPPF)
    xrow_allreduce(A, "v_add_f32", "v24", "v25")
    xrow_allreduce(A, "v_add_f32", "v23", "v25")
    A("s_cmp_lg_u32 s%d, 0" % sWAVE)
    A("s_cbranch_scc1 K1_NOML")
    A("s_lshl_b32 s%d, s2, 3" % sT0)
    A("s_add_u32 s%d, s%d, 0x%x" % (sT0, sT0, WS_ML))
    A("v_mov_b32 v3, s%d" % sT0)
    A("buffer_store_dwordx2 v[22:23], v3, %s, 0 offen" % sr(sWS, 4))
    A.label("K1_NOML")
    A("s_waitcnt vmcnt(0)")
    for r in range(8):
        for k in range(4):
            A("v_lshlrev_b32 v26, 16, v%d" % (WQ + 4 * r + k))
            A("v_and_b32 v27, %s, v%d" % (HI, WQ + 4 * r + k))
            op = "v_mul_f32_dpp" if r == 0 else "v_fmac_f32_dpp"
            A("%s %s, v24, v26 row_newbcast:%d %s" % (op, acc[2 * k], r, DPPF))
            A("%s %s, v24, v27 row_newbcast:%d %s" % (op, acc[2 * k + 1], r, DPPF))
    A("s_lshl_b32 s%d, s%d, 11" % (sT0, sWAVE))
    A("v_lshlrev_b32 v3, 5, %s" % vLANE)
    A("v_add_u32 v3, s%d, v3" % sT0)
    A("ds_write_b128 v3, v[8:11] offset:%d" % L_TP)
    A("ds_write_b128 v3, v[12:15] offset:%d" % (L_TP + 16))
    A("s_waitcnt lgkmcnt(0)")
    A("s_barrier")
    if STAMP:
        stamp()
        A("s_waitcnt lgkmcnt(0)")
        A("s_lshl_b32 s%d, s2, 4" % sT0)
        A("s_add_u32 s%d, s%d, s%d" % (sT0, sT0, sWAVE))
        A("s_lshl_b32 s%d, s%d, 5" % (sT0, sT0))
        A("s_add_u32 s%d, s%d, 0x1c0000" % (sT0, sT0))
        A("v_mov_b32 v3, s%d" % sT0)
        for i in range(5):
            A("v_mov_b32 v%d, s%d" % (16 + i, 4 + 2 * i))
        A("buffer_store_dwordx4 v[16:19], v3, %s, 0 offen" % sr(sWS, 4))
        A("buffer_store_dword v20, v3, %s, 0 offen offset:16" % sr(sWS, 4))
    A("s_cmp_ge_u32 s%d, 8" % sWAVE)
    A("s_cbranch_scc1 K1_END")
    A("v_lshlrev_b32 v3, 2, %s" % vTID)
    for i in range(16):
        A("ds_read_b32 v%d, v3 offset:%d" % (16 + i, L_TP + 2048 * i))
    A("s_waitcnt lgkmcnt(0)")
    for i in range(8):
        A("v_add_f32 v%d, v%d, v%d" % (16 + i, 16 + i, 24 + i))
    for i in range(4):
        A("v_add_f32 v%d, v%d, v%d" % (16 + i, 16 + i, 20 + i))
    A("v_add_f32 v16, v16, v18")
    A("v_add_f32 v17, v17, v19")
    A("v_add_f32 v16, v16, v17")
    A("s_lshl_b32 s%d, s2, 11" % sT0)
    A("v_add_u32 v3, s%d, v3" % sT0)
    A("buffer_store_dword v16, v3, %s, 0 offen" % sr(sWS, 4))
    A.label("K1_END")
    A("s_endpgm")
    return A.text()


def gen_k2():
    A = Asm()
    sT, sY, sX, sO = 28, 32, 36, 40
    sB, sCS, sT0, sT1 = 44, 45, 46, 47
    A("s_cmp_ge_u32 s2, 64")
    A("s_cbranch_scc1 K2_END")
    A("s_load_dwordx2 s[4:5], s[0:1], 0")
    A("s_load_dwordx2 s[6:7], s[0:1], 72")
    A("s_load_dwordx2 s[8:9], s[0:1], 88")
    A("s_lshr_b32 s%d, s2, 5" % sB)
    A("s_and_b32 s%d, s2, 31" % sCS)
    A("v_and_b32 v1, 3, v0")
    A("v_lshrrev_b32 v2, 2, v0")
    A("s_waitcnt lgkmcnt(0)")
    srd(A, sT, 8, WS_Y)
    srd(A, sY, 8, WS_Y + NFFN * 4096)
    srd(A, sX, 4, 2048)
    srd(A, sO, 6, 2048)
    A("s_lshl_b32 s%d, s%d, 18" % (sT0, sB))
    A("s_lshl_b32 s%d, s%d, 6" % (sT1, sCS))
    A("s_add_u32 s%d, s%d, s%d" % (sT0, sT0, sT1))
    A("v_lshlrev_b32 v3, 11, v2")
    A("v_lshl_add_u32 v3, v1, 4, v3")
    A("v_add_u32 v4, s%d, v3" % sT0)
    A("s_mov_b32 s48, 0x20000")
    A("buffer_load_dwordx4 v[8:11], v4, %s, 0 offen" % sr(sT, 4))
    A("buffer_load_dwordx4 v[12:15], v4, %s, s48 offen" % sr(sT, 4))
    A("v_and_b32 v5, 31, v2")
    A("v_lshlrev_b32 v5, 3, v5")
    A("s_lshl_b32 s%d, s%d, 10" % (sT0, sB))
    A("s_add_u32 s%d, s%d, 0x%x" % (sT0, sT0, WS_ML))
    A("v_add_u32 v5, s%d, v5" % sT0)
    for c in range(4):
        A("buffer_load_dwordx2 v[%d:%d], v5, %s, 0 offen offset:%d" % (16 + 2 * c, 17 + 2 * c, sr(sT, 4), 256 * c))
    A("s_lshl_b32 s%d, s%d, 11" % (sT0, sB))
    A("s_add_u32 s%d, s%d, s%d" % (sT0, sT0, sT1))
    A("s_add_u32 s%d, s%d, 0x%x" % (sT0, sT0, WS_Y))
    A("v_lshlrev_b32 v3, 12, v2")
    A("v_lshl_add_u32 v3, v1, 4, v3")
    A("v_add_u32 v4, s%d, v3" % sT0)
    for i in range(3):
        A("s_mov_b32 s48, 0x%x" % (i * 64 * 4096))
        A("buffer_load_dwordx4 v[%d:%d], v4, %s, s48 offen" % (24 + 4 * i, 27 + 4 * i, sr(sY, 4)))
    A("s_lshl_b32 s%d, s%d, 10" % (sT0, sB))
    A("s_lshl_b32 s%d, s%d, 5" % (sT1, sCS))
    A("s_add_u32 s%d, s%d, s%d" % (sT0, sT0, sT1))
    A("v_and_b32 v6, 15, v0")
    A("v_lshlrev_b32 v6, 1, v6")
    A("v_add_u32 v6, s%d, v6" % sT0)
    A("buffer_load_ushort v7, v6, %s, 0 offen" % sr(sX, 4))
    A("s_waitcnt vmcnt(4)")
    A("v_max3_f32 v36, v16, v18, v20")
    A("v_max_f32 v36, v36, v22")
    for c in range(4):
        A("v_sub_f32 v%d, v%d, v36" % (16 + 2 * c, 16 + 2 * c))
    for c in range(4):
        A("v_mul_f32 v%d, %s, v%d" % (16 + 2 * c, LOG2E, 16 + 2 * c))
    for c in range(4):
        A("v_exp_f32 v%d, v%d" % (16 + 2 * c, 16 + 2 * c))
    A("v_mul_f32 v36, v16, v17")
    A("v_fmac_f32 v36, v18, v19")
    A("v_fmac_f32 v36, v20, v21")
    A("v_fmac_f32 v36, v22, v23")
    A("v_rcp_f32 v37, v36")
    A("v_fma_f32 v38, -v36, v37, 1.0")
    A("v_fmac_f32 v37, v38, v37")
    A("v_cmp_gt_u32 vcc, 32, v2")
    A("v_cndmask_b32 v38, v18, v16, vcc")
    A("v_cndmask_b32 v39, v22, v20, vcc")
    A("v_mul_f32 v38, v38, v37")
    A("v_mul_f32 v39, v39, v37")
    for k in range(4):
        A("v_mul_f32 v%d, v38, v%d" % (8 + k, 8 + k))
    for k in range(4):
        A("v_fmac_f32 v%d, v39, v%d" % (8 + k, 12 + k))
    A("s_waitcnt vmcnt(1)")
    for k in range(4):
        A("v_add_f32 v%d, v%d, v%d" % (12 + k, 24 + k, 28 + k))
    for k in range(4):
        A("v_add_f32 v%d, v%d, v%d" % (12 + k, 12 + k, 32 + k))
    for k in range(8):
        A("v_add_f32_dpp v%d, v%d, v%d row_ror:4 %s" % (8 + k, 8 + k, 8 + k, DPPF))
    for k in range(8):
        A("v_add_f32_dpp v%d, v%d, v%d row_ror:8 %s" % (8 + k, 8 + k, 8 + k, DPPF))
    rows_merge8(A, [v(8 + i) for i in range(8)])
    A("v_and_b32 v16, 63, v0")
    A("v_lshrrev_b32 v17, 4, v16")
    A("v_and_b32 v18, 1, v17")
    A("v_lshlrev_b32 v18, 1, v18")
    A("v_lshrrev_b32 v17, 1, v17")
    A("v_or_b32 v18, v18, v17")
    A("v_lshl_add_u32 v18, v1, 2, v18")
    A("v_lshrrev_b32 v17, 6, v0")
    A("v_lshl_add_u32 v18, v17, 5, v18")
    A("v_lshlrev_b32 v18, 2, v18")
    A("ds_write_b32 v18, v8")
    A("ds_write_b32 v18, v12 offset:64")
    A("s_waitcnt lgkmcnt(0)")
    A("s_barrier")
    A("v_cmp_gt_u32 vcc, 16, v0")
    A("s_and_saveexec_b64 s[50:51], vcc")
    A("s_cbranch_execz K2_END")
    A("v_lshlrev_b32 v18, 2, v0")
    for w in range(4):
        A("ds_read_b32 v%d, v18 offset:%d" % (20 + w, 128 * w))
        A("ds_read_b32 v%d, v18 offset:%d" % (24 + w, 128 * w + 64))
    A("s_waitcnt lgkmcnt(0)")
    A("v_add_f32 v20, v20, v21")
    A("v_add_f32 v22, v22, v23")
    A("v_add_f32 v24, v24, v25")
    A("v_add_f32 v26, v26, v27")
    A("v_add_f32 v20, v20, v22")
    A("v_add_f32 v24, v24, v26")
    rne2(A, "v20", "v24", "v21")
    A("v_mul_f32 v25, 0xbfb8aa3b, v24")
    A("v_exp_f32 v25, v25")
    A("v_add_f32 v25, 1.0, v25")
    A("v_rcp_f32 v26, v25")
    A("v_mul_f32 v27, v24, v26")
    A("v_fma_f32 v28, -v27, v25, v24")
    A("v_fmac_f32 v27, v28, v26")
    rne1(A, "v27", "v21")
    A("v_mul_f32 v20, v20, v27")
    rne1(A, "v20", "v21")
    A("s_waitcnt vmcnt(0)")
    A("v_lshlrev_b32 v7, 16, v7")
    A("v_add_f32 v20, v20, v7")
    A("v_cvt_pk_bf16_f32 v20, v20, v20")
    A("buffer_store_short v20, v6, %s, 0 offen" % sr(sO, 4))
    A.label("K2_END")
    A("s_endpgm")
    return A.text()


def kd(name, vg, sg):
    return """.amdhsa_kernel %s
  .amdhsa_next_free_vgpr %d
  .amdhsa_next_free_sgpr %d
  .amdhsa_accum_offset %d
  .amdhsa_group_segment_fixed_size 0
  .amdhsa_kernarg_size 96
  .amdhsa_user_sgpr_count 2
  .amdhsa_user_sgpr_kernarg_segment_ptr 1
  .amdhsa_system_sgpr_workgroup_id_x 1
.end_amdhsa_kernel
""" % (name, vg, sg, (vg + 3) // 4 * 4)


def main():
    out = sys.argv[1]
    k1 = NAME + "_kernel"
    k2 = "combine_kernel"
    hdr = open("cdna_kernels/%s.s.ref" % NAME).read().split("; Override launch")[0]
    s = hdr
    s += "; @launch kernel=%s grid=(256,1,1) block=(1024,1,1) lds=%d\n" % (k1, L_TOTAL)
    s += "; @launch kernel=%s grid=(64,1,1) block=(256,1,1) lds=512\n" % k2
    s += '.amdgcn_target "amdgcn-amd-amdhsa--gfx950"\n.text\n'
    for nm, body in ((k1, gen_k1()), (k2, gen_k2())):
        s += ".globl %s\n.p2align 8\n.type %s,@function\n%s:\n" % (nm, nm, nm)
        s += body
    s += '.section .rodata,"a"\n.p2align 6\n'
    s += kd(k1, 128, 102)
    s += ".p2align 6\n"
    s += kd(k2, 40, 56)
    open(out, "w").write(s)


main()
```
